```python
import torch

def _softmax(x, axis=-1):
    return torch.softmax(x, dim=axis)
def _gelu(x):
    return torch.nn.functional.gelu(x, approximate="tanh")
def _silu(x):
    return torch.nn.functional.silu(x)
def _sigmoid(x):
    return torch.sigmoid(x)
def _layernorm(x, axis=-1, eps=1e-5):
    m = x.mean(dim=axis, keepdim=True)
    v = x.var(dim=axis, keepdim=True, unbiased=False)
    return (x - m) / torch.sqrt(v + eps)
def _scatter_add(tgt, idx, src, axis=0):
    return tgt.clone().index_add_(axis, idx, src)
def _segment_sum(src, seg, n):
    out = torch.zeros((n,) + src.shape[1:], dtype=src.dtype)
    return out.index_add_(0, seg, src)
def _pad(x, pw):
    flat = tuple(v for pair in reversed(pw) for v in pair)
    return torch.nn.functional.pad(x, flat)

kernel_name = 'sequential_preLN__mha_block__swiglu_ffn__prompt'

def setup_inputs():

    _w = (lambda a: (lambda t: t.to(torch.bfloat16) if t.is_floating_point() else t)(torch.as_tensor(a)))
    def _A_setup():
        B, S, D, H = 1, 2048, 640, 32
        return {
            "x": _w((lambda *s: torch.randn(*s, dtype=torch.bfloat16) * 0.05)(B, S, D)),
            "wqkv": _w((lambda *s: torch.randn(*s, dtype=torch.bfloat16) * 0.05)(D, 3 * D)),
            "wo": _w((lambda *s: torch.randn(*s, dtype=torch.bfloat16) * 0.05)(D, D)),
        }
    _A_in = _A_setup()

    def _B_setup():
        B, S, D, F = 1, 2048, 640, 1728
        return {
            "x": _w((lambda *s: torch.randn(*s, dtype=torch.bfloat16) * 0.05)(B, S, D)),
            "w_gate": _w((lambda *s: torch.randn(*s, dtype=torch.bfloat16) * 0.05)(D, F)),
            "w_up": _w((lambda *s: torch.randn(*s, dtype=torch.bfloat16) * 0.05)(D, F)),
            "w_down": _w((lambda *s: torch.randn(*s, dtype=torch.bfloat16) * 0.05)(F, D)),
        }
    _B_in = _B_setup()

    return {
        "A_x": _A_in["x"],
        "A_wqkv": _A_in["wqkv"],
        "A_wo": _A_in["wo"],
        "B_x": _B_in["x"],
        "B_w_gate": _B_in["w_gate"],
        "B_w_up": _B_in["w_up"],
        "B_w_down": _B_in["w_down"],
    }

def reference(A_x, A_wqkv, A_wo, B_x, B_w_gate, B_w_up, B_w_down):
    def _A_ref(x, wqkv, wo):
        B, S, D = x.shape
        H = 32
        Dh = D // H
        qkv = (lambda x, *d: x.permute(*d))((x @ wqkv).reshape(B, S, 3, H, Dh), 2, 0, 3, 1, 4)
        q, k, v = qkv[0], qkv[1], qkv[2]
        scores = torch.einsum("bhqd,bhkd->bhqk", q, k) * (Dh ** -0.5)
        p = _softmax(scores, axis=-1)
        o = torch.einsum("bhqk,bhkd->bhqd", p, v)
        return (lambda x, *d: x.permute(*d))(o, 0, 2, 1, 3).reshape(B, S, D) @ wo

    def _B_ref(x, w_gate, w_up, w_down):
        g = _silu(x @ w_gate)
        u = x @ w_up
        return (g * u) @ w_down

    x = A_x
    h = x + _A_ref(_layernorm(x, axis=-1), A_wqkv, A_wo)
    h2 = h + _B_ref(_layernorm(h, axis=-1), B_w_gate, B_w_up, B_w_down)
    return h2
```

```python
import re

REG_RE = re.compile(r'(-?)(abs\()?\b([vsa])(\d+)\b|\b([vsa])\[(\d+):(\d+)\]')


def regs_of(tok):
    tok = tok.strip()
    out = []
    m = re.fullmatch(r'-?(?:abs\(|\|)?([vsa])\[(\d+):(\d+)\]\)?\|?', tok)
    if m:
        k, a, b = m.group(1), int(m.group(2)), int(m.group(3))
        return [(k, i) for i in range(a, b + 1)]
    m = re.fullmatch(r'-?(?:abs\(|\|)?([vsa])(\d+)\)?\|?', tok)
    if m:
        return [(m.group(1), int(m.group(2)))]
    if tok == 'vcc':
        return [('vcc', 0)]
    if tok in ('vcc_lo', 'vcc_hi'):
        return [('vcc', 0)]
    if tok == 'exec':
        return [('exec', 0)]
    if tok == 'm0':
        return [('m0', 0)]
    return out


TRANS = ('v_exp_', 'v_log_', 'v_rcp_', 'v_rsq_', 'v_sqrt_', 'v_sin_', 'v_cos_')


def mfma_passes(mn):
    if '32x32x16' in mn or '32x32x8' in mn:
        return 8
    if '16x16x32' in mn or '16x16x16' in mn:
        return 4
    raise ValueError("unknown mfma " + mn)


class Ins:
    __slots__ = ('text', 'mn', 'ops', 'kind', 'wr', 'rd', 'srcc', 'srcab', 'ws', 'label', 'target',
                 'dpp', 'lds_dma', 'store_data', 'passes')

    def __init__(self, text):
        self.text = text
        t = text.split(';')[0].strip()
        self.label = None
        self.target = None
        self.wr, self.rd, self.srcc, self.srcab, self.store_data = [], [], [], [], []
        self.kind = 'other'
        self.ws = 1
        self.dpp = False
        self.lds_dma = False
        self.passes = 0
        if not t:
            self.kind = 'none'
            self.ws = 0
            self.mn = ''
            return
        if t.endswith(':'):
            self.kind = 'label'
            self.label = t[:-1]
            self.ws = 0
            self.mn = ''
            return
        if t.startswith('.'):
            self.kind = 'none'
            self.ws = 0
            self.mn = ''
            return
        parts = t.split(None, 1)
        mn = parts[0]
        self.mn = mn
        rest = parts[1] if len(parts) > 1 else ''
        ops, cur, depth = [], '', 0
        for ch in rest:
            if ch == '[':
                depth += 1
            if ch == ']':
                depth -= 1
            if ch == ',' and depth == 0:
                ops.append(cur.strip())
                cur = ''
            else:
                cur += ch
        if cur.strip():
            ops.append(cur.strip())
        mods = ''
        if ops:
            sp = ops[-1].split(None, 1)
            if len(sp) > 1:
                ops[-1] = sp[0]
                mods = sp[1]
        self.ops = ops
        R = regs_of
        if mn == 's_nop':
            self.kind = 'nop'
            self.ws = int(ops[0], 0) + 1
        elif mn.startswith('s_cbranch') or mn == 's_branch':
            self.kind = 'branch'
            self.target = ops[0]
        elif mn == 's_endpgm':
            self.kind = 'end'
        elif mn.startswith('v_mfma'):
            self.kind = 'mfma'
            self.passes = mfma_passes(mn)
            self.wr = R(ops[0])
            self.srcab = R(ops[1]) + R(ops[2])
            self.srcc = R(ops[3])
            self.rd = self.srcab + self.srcc
        elif mn.startswith('v_'):
            self.kind = 'trans' if mn.startswith(TRANS) else 'valu'
            self.dpp = 'dpp' in mn or 'quad_perm' in mods or 'row_' in mods
            if mn.startswith('v_cmp'):
                self.wr = R(ops[0])
                for o in ops[1:]:
                    self.rd += R(o)
                if mn.startswith('v_cmpx'):
                    self.wr += [('exec', 0)]
            elif mn.startswith(('v_add_co', 'v_sub_co', 'v_subrev_co', 'v_addc_co', 'v_subb_co')):
                self.wr = R(ops[0]) + R(ops[1])
                for o in ops[2:]:
                    self.rd += R(o)
            elif mn.startswith(('v_permlane32_swap', 'v_permlane16_swap')):
                self.wr = R(ops[0]) + R(ops[1])
                self.rd = R(ops[0]) + R(ops[1])
                self.kind = 'permlane'
            else:
                self.wr = R(ops[0])
                for o in ops[1:]:
                    self.rd += R(o)
                if mn.startswith(('v_fmac', 'v_dot2c', 'v_pk_fmac')) or 'UNUSED_PRESERVE' in mods:
                    self.rd += R(ops[0])
                if mn.startswith('v_cndmask') and len(ops) == 3:
                    self.rd += [('vcc', 0)]
                if mn.startswith(('v_readfirstlane', 'v_readlane')):
                    self.kind = 'readlane'
                if mn.startswith('v_writelane'):
                    self.rd += R(ops[0])
        elif mn.startswith('ds_'):
            self.kind = 'ds'
            if mn.startswith(('ds_read', 'ds_bpermute', 'ds_permute', 'ds_swizzle')):
                self.wr = R(ops[0])
                for o in ops[1:]:
                    self.rd += R(o)
            else:
                for o in ops:
                    self.rd += R(o)
        elif mn.startswith(('buffer_', 'global_')):
            self.kind = 'vmem'
            allm = ' ' + mods + ' '
            is_lds = (' lds ' in allm) or mn.startswith('global_load_lds')
            if mn in ('buffer_inv', 'buffer_wbl2'):
                pass
            elif is_lds:
                self.lds_dma = True
                for o in ops:
                    self.rd += R(o)
                self.rd += [('m0', 0)]
            elif '_load' in mn:
                self.wr = R(ops[0])
                for o in ops[1:]:
                    self.rd += R(o)
            elif '_store' in mn or '_atomic' in mn:
                for o in ops:
                    self.rd += R(o)
                if mn.startswith('buffer_'):
                    data = R(ops[0])
                else:
                    data = R(ops[1])
                if 'x4' in mn or 'x3' in mn:
                    self.store_data = data
        elif mn.startswith('s_'):
            self.kind = 'salu'
            if mn.startswith(('s_cmp', 's_waitcnt', 's_barrier', 's_setprio', 's_sleep', 's_bitcmp')):
                for o in ops:
                    self.rd += R(o)
            elif mn.startswith(('s_load', 's_memtime', 's_memrealtime', 's_buffer_load')):
                self.kind = 'smem'
                self.wr = R(ops[0])
                for o in ops[1:]:
                    self.rd += R(o)
            elif 'saveexec' in mn:
                self.wr = R(ops[0]) + [('exec', 0)]
                self.rd = R(ops[1])
            else:
                self.wr = R(ops[0]) if ops else []
                for o in ops[1:]:
                    self.rd += R(o)


def vnorm(r):
    return r


MF_SRCC_OVL = {2: 4, 4: 6, 8: 10, 16: 18}
MF_AB = {2: 5, 4: 8, 8: 12, 16: 20}
MF_WAR = {2: 1, 4: 3, 8: 7, 16: 15}


def required(p, c):
    need = 0
    isvec = lambda r: r[0] in ('v', 'a')
    pw = set(p.wr)
    if p.kind == 'mfma':
        D = pw
        if c.kind == 'mfma':
            if set(c.srcc) & D:
                if c.srcc == p.wr and c.passes == p.passes:
                    need = max(need, 0 if p.passes >= 4 else 2)
                else:
                    need = max(need, MF_SRCC_OVL[p.passes])
            if set(c.srcab) & D:
                need = max(need, MF_AB[p.passes])
            if (set(c.wr) & D) and not (set(c.srcc) & D):
                need = max(need, MF_SRCC_OVL[p.passes])
        elif c.kind in ('valu', 'trans', 'permlane', 'readlane', 'ds', 'vmem'):
            if (set(c.rd) | set(c.wr)) & D:
                need = max(need, MF_AB[p.passes])
        if c.kind in ('valu', 'trans', 'permlane') and set(c.wr) & set(p.srcc):
            need = max(need, MF_WAR[p.passes])
    if p.kind in ('valu', 'trans', 'permlane', 'readlane'):
        vw = {r for r in pw if isvec(r)}
        sw = {r for r in pw if r[0] in ('s', 'vcc')}
        if c.kind == 'mfma' and vw & set(c.rd):
            need = max(need, 2)
        if p.kind == 'trans' and c.kind in ('valu', 'permlane', 'readlane', 'mfma', 'ds', 'vmem') and vw & set(c.rd):
            need = max(need, 1)
        if c.kind == 'readlane' and vw & set(c.rd):
            need = max(need, 1)
        if c.kind == 'permlane' and vw & set(c.rd):
            need = max(need, 2)
        if c.dpp and vw & set(c.rd):
            need = max(need, 2)
        if sw:
            if c.kind == 'vmem' and sw & set(c.rd):
                need = max(need, 5)
            if c.kind in ('valu', 'trans', 'permlane', 'mfma') and sw & set(c.rd):
                need = max(need, 2)
            if c.kind == 'readlane' and sw & set(c.rd):
                need = max(need, 4)
            if c.kind in ('salu', 'branch', 'smem') and sw & set(c.rd):
                need = max(need, 3)
        if ('exec', 0) in pw:
            need = max(need, 5)
    if p.mn.startswith('v_dot'):
        if c.mn == p.mn:
            srcs = set()
            for o in c.ops[1:3]:
                srcs |= set(regs_of(o))
            if srcs & pw:
                need = max(need, 3)
        elif (set(c.rd) | set(c.wr)) & pw:
            need = max(need, 3)
    if p.kind == 'valu' and p.mn.startswith('v_cmp') and c.kind == 'branch' and 'vcc' in c.mn:
        need = max(need, 5)
    if p.kind == 'salu' and ('m0', 0) in pw and c.lds_dma:
        need = max(need, 1)
    if p.kind == 'salu' and ('exec', 0) in pw and c.kind == 'mfma':
        need = max(need, 4)
    if p.kind == 'vmem' and p.store_data:
        if set(c.wr) & set(p.store_data):
            need = max(need, 2)
    return need


def fix_hazards(lines, verbose=False, name=''):
    total_ins = 0
    for _ in range(10000):
        ins = [Ins(l) for l in lines]
        labels = {x.label: i for i, x in enumerate(ins) if x.label}
        viol = None
        for i, p in enumerate(ins):
            if p.kind not in ('mfma', 'valu', 'trans', 'permlane', 'readlane', 'salu', 'vmem'):
                continue
            if p.kind == 'salu' and not ({('m0', 0), ('exec', 0)} & set(p.wr)):
                continue
            if p.kind == 'vmem' and not p.store_data:
                continue
            stack = [(i + 1, 0)]
            seen = set()
            while stack and viol is None:
                j, d = stack.pop()
                while j < len(ins) and d < 21:
                    if (j, d) in seen:
                        break
                    seen.add((j, d))
                    c = ins[j]
                    if c.kind in ('none', 'label'):
                        j += 1
                        continue
                    need = required(p, c)
                    if need > d:
                        viol = (j, need - d, i)
                        break
                    if c.kind == 'end':
                        break
                    if c.kind == 'branch':
                        if c.target in labels:
                            stack.append((labels[c.target], d + 1))
                        if c.mn == 's_branch':
                            break
                    d += c.ws
                    j += 1
            if viol:
                break
        if not viol:
            break
        j, n, i = viol
        if verbose:
            print(f"[{name}] hazard: '{ins[i].text.strip()}' -> '{ins[j].text.strip()}' need +{n}")
        new = []
        while n > 0:
            k = min(n, 16)
            new.append(f"  s_nop {k - 1}")
            n -= k
        total_ins += 1
        lines = lines[:j] + new + lines[j:]
    return lines, total_ins


class Kern:
    def __init__(self, name, nvgpr, nsgpr=96, accum=None, nagpr=0):
        self.name = name
        self.lines = []
        self.nvgpr = nvgpr
        self.nsgpr = nsgpr
        self.nagpr = nagpr
        self.uid = 0

    def __call__(self, s):
        for l in s.split('\n'):
            l = l.strip()
            if l:
                self.lines.append(l if l.endswith(':') else '  ' + l)

    def label(self, base):
        self.uid += 1
        return f"L_{self.name}_{base}_{self.uid}"

    def text(self, verbose=False):
        lines, n = fix_hazards(self.lines, verbose, self.name)
        if n:
            print(f"[{self.name}] inserted {n} nop groups")
        nv = (self.nvgpr + 3) // 4 * 4
        out = [f".globl {self.name}", ".p2align 8", f".type {self.name},@function", f"{self.name}:"]
        out += lines
        body = "\n".join(out)
        desc = f""".amdhsa_kernel {self.name}
  .amdhsa_next_free_vgpr {nv + self.nagpr}
  .amdhsa_next_free_sgpr {self.nsgpr}
  .amdhsa_accum_offset {nv}
  .amdhsa_group_segment_fixed_size 0
  .amdhsa_kernarg_size 80
  .amdhsa_user_sgpr_count 2
  .amdhsa_user_sgpr_kernarg_segment_ptr 1
  .amdhsa_system_sgpr_workgroup_id_x 1
.end_amdhsa_kernel"""
        return body, desc


def build_file(header_lines, kernels, launches, verbose=False):
    out = list(header_lines)
    for (k, grid, block, lds) in launches:
        out.append(f"; @launch kernel={k} grid=({grid},1,1) block=({block},1,1) lds={lds}")
    out.append('.amdgcn_target "amdgcn-amd-amdhsa--gfx950"')
    out.append('.text')
    descs = []
    for k in kernels:
        b, d = k.text(verbose)
        out.append(b)
        descs.append(d)
    out.append('.section .rodata,"a"')
    for d in descs:
        out.append('.p2align 6')
        out.append(d)
    return "\n".join(out) + "\n"
```

```python
import sys, os
sys.path.insert(0, os.path.dirname(os.path.abspath(__file__)))
from asmlib import Kern, build_file

def _al(x, a=4096):
    return (x + a - 1) // a * a

S, D, H, DH, F = 2048, 640, 32, 20, 1728
KS_D, KS_F = D // 32, F // 32
QT = 1536
KVT = 2880
WS = {}
_off = 0
for _n, _sz in (("WQKVF", 120 * KS_D * 1024), ("WOF", 40 * KS_D * 1024), ("WGF", 108 * KS_D * 1024),
                ("WUF", 108 * KS_D * 1024), ("WDF", 40 * KS_F * 1024), ("CSP", KS_D * 2 * F * 4),
                ("QF", H * 64 * QT), ("KV", H * 64 * KVT + 8192), ("OF", 128 * KS_D * 1024),
                ("HF", 128 * KS_D * 1024), ("STATS", S * 8 * 8), ("ACT", 128 * KS_F * 1024)):
    WS[_n] = _off
    _off = _al(_off + _sz)
WS_TOTAL = _off

ARG = dict(x=0, wqkv=8, wo=16, bx=24, wg=32, wu=40, wd=48, out=56, dbg=64, ws=72)
QSCALE = 0x3EA52B2C
import struct, math
def f32bits(x):
    return struct.unpack("<I", struct.pack("<f", x))[0]
QSCALE = f32bits(DH ** -0.5 * math.log2(math.e))
ONES_BF16 = 0x3F803F80


def srd(k, s, argoff, nbytes, tmp=None):
    k(f"s_load_dwordx2 s[{s}:{s+1}], s[0:1], {argoff}")
    return f"""s_and_b32 s{s+1}, s{s+1}, 0xffff
s_mov_b32 s{s+2}, {nbytes}
s_mov_b32 s{s+3}, 0x00020000"""


def gen_prep():
    k = Kern("prep_kernel", 64)
    segs = [("wqkv", 1920, 20, 24, 5, "WQKVF"), ("wo", 640, 20, 8, 5, "WOF"), ("wd", 640, 54, 8, 5, "WDF"),
            ("wg", 1728, 20, 36, 3, "WGF"), ("wu", 1728, 20, 36, 3, "WUF")]
    total = sum(ks * nc for _, _, ks, nc, _, _ in segs)
    nwg = (total + 3) // 4
    k(f"""
s_cmp_ge_u32 s2, {nwg}
s_cbranch_scc1 L_prep_end
v_lshrrev_b32 v1, 6, v0
v_and_b32 v2, 63, v0
s_nop 0
v_readfirstlane_b32 s3, v1
s_lshl_b32 s20, s2, 2
s_add_u32 s20, s20, s3
s_mul_i32 s21, s3, 5120
s_cmp_ge_u32 s20, {total}
s_cbranch_scc1 L_prep_end
s_load_dwordx2 s[12:13], s[0:1], {ARG['ws']}
""")
    start = 0
    for i, (arg, N, KS, nch, nb, dst) in enumerate(segs):
        cnt = KS * nch
        k(f"""
s_cmp_lt_u32 s20, {start + cnt}
s_cbranch_scc0 L_prep_seg{i+1}
s_load_dwordx2 s[8:9], s[0:1], {ARG[arg]}
s_sub_u32 s20, s20, {start}
s_mov_b32 s10, {KS * 32 * N * 2}
s_mov_b32 s22, {N * 2}
s_mov_b32 s23, {KS}
s_mov_b32 s24, {nch}
s_mov_b32 s25, {WS[dst]}
s_mov_b32 s26, {(1 << 32) // nch + 1}
s_mov_b32 s27, {1 if arg == 'wu' else 0}
s_branch L_prep_nb{nb}
L_prep_seg{i+1}:""")
        start += cnt
    k("s_endpgm")
    for nb in (5, 3):
        Srow = nb * 32
        cpr = nb * 2
        mul, sh = (205, 11) if nb == 5 else (171, 10)
        k(f"""
L_prep_nb{nb}:
s_mul_hi_u32 s28, s20, s26
s_mul_i32 s29, s28, s24
s_sub_u32 s29, s20, s29           ; chunk
s_waitcnt lgkmcnt(0)
s_and_b32 s9, s9, 0xffff
s_mov_b32 s11, 0x00020000
s_and_b32 s13, s13, 0xffff
s_mov_b32 s14, {WS_TOTAL}
s_mov_b32 s15, 0x00020000
s_lshl_b32 s30, s28, 5
s_mul_i32 s30, s30, s22           ; ks*32*stride
s_mul_i32 s31, s29, {Srow}
s_add_u32 s30, s30, s31
""")
        for i in range(nb):
            k(f"""
v_add_u32 v3, {i*64}, v2
v_mul_u32_u24 v4, {mul}, v3
v_lshrrev_b32 v4, {sh}, v4        ; row
v_mul_u32_u24 v5, {cpr}, v4
v_sub_u32 v5, v3, v5              ; cc
v_mul_lo_u32 v4, v4, s22
v_lshl_add_u32 v4, v5, 4, v4
s_add_u32 m0, s21, {i*1024}
s_nop 0
buffer_load_dwordx4 v4, s[8:11], s30 offen lds
""")
        k(f"""
v_lshrrev_b32 v6, 4, v2           ; g
v_bfe_u32 v7, v2, 2, 2            ; r
v_lshl_add_u32 v6, v6, 2, v7
v_mul_u32_u24 v6, {Srow}, v6
v_and_b32 v7, 3, v2
v_lshl_add_u32 v6, v7, 3, v6
v_add_u32 v6, s21, v6
v_lshlrev_b32 v8, 4, v2           ; lane*16
s_mul_i32 s31, s29, {nb}
s_mul_i32 s31, s31, s23
s_add_u32 s31, s31, s28
s_lshl_b32 s31, s31, 10
s_add_u32 s31, s31, s25
s_lshl_b32 s32, s23, 10
s_waitcnt vmcnt(0)
""")
        for b in range(nb):
            k(f"""
ds_read_b64_tr_b16 v[{16+4*b}:{17+4*b}], v6 offset:{b*32}
ds_read_b64_tr_b16 v[{18+4*b}:{19+4*b}], v6 offset:{16*Srow + b*32}
""")
        k("s_waitcnt lgkmcnt(0)")
        for b in range(nb):
            k(f"""
buffer_store_dwordx4 v[{16+4*b}:{19+4*b}], v8, s[12:15], s31 offen
s_add_u32 s31, s31, s32
""")
        if nb == 3:
            k(f"""
v_mov_b32 v40, {ONES_BF16}
v_mov_b32 v41, {ONES_BF16}
v_mov_b32 v42, {ONES_BF16}
v_mov_b32 v43, {ONES_BF16}
s_lshl_b32 s33, s28, 1
s_add_u32 s33, s33, s27
s_mul_i32 s33, s33, 1728
s_mul_i32 s34, s29, 48
s_add_u32 s33, s33, s34
s_lshl_b32 s33, s33, 2
s_add_u32 s33, s33, {WS['CSP']}
v_lshrrev_b32 v9, 4, v2
v_lshlrev_b32 v9, 4, v9           ; g*16 bytes
v_and_b32 v10, 15, v2
v_cmp_eq_u32 vcc, 0, v10
""")
            for b in range(3):
                k(f"v_mfma_f32_16x16x32_bf16 v[{44+4*b}:{47+4*b}], v[{16+4*b}:{19+4*b}], v[40:43], 0")
            k("s_and_saveexec_b64 s[36:37], vcc")
            for b in range(3):
                k(f"buffer_store_dwordx4 v[{44+4*b}:{47+4*b}], v9, s[12:15], s33 offen offset:{b*64}")
        k("s_endpgm")
    k("L_prep_end:\ns_endpgm")
    return k, nwg, 256, 4 * 5120


def gen_qkv():
    k = Kern("qkv_kernel", 248)
    SLOT = 30720
    ASTG = 2 * SLOT
    AST = 1296
    LDS = ASTG + 64 * AST
    A0 = 8
    ACC = 168
    BF = 200
    T = 232
    k(f"""
s_cmp_ge_u32 s2, 256
s_cbranch_scc1 L_qkv_end
s_load_dwordx2 s[4:5], s[0:1], {ARG['x']}
s_load_dwordx2 s[12:13], s[0:1], {ARG['ws']}
v_lshrrev_b32 v1, 6, v0
v_and_b32 v2, 63, v0              ; lane
s_and_b32 s16, s2, 7
v_readfirstlane_b32 s3, v1        ; wave
s_lshr_b32 s17, s2, 3
v_lshlrev_b32 v3, 4, v2           ; lane*16
s_and_b32 s18, s3, 1              ; rh
s_lshr_b32 s19, s3, 1             ; cg
s_waitcnt lgkmcnt(0)
s_and_b32 s5, s5, 0xffff
s_mov_b32 s6, {S*D*2}
s_mov_b32 s7, 0x00020000
s_and_b32 s13, s13, 0xffff
s_mov_b32 s14, {WS_TOTAL}
s_mov_b32 s15, 0x00020000
""")
    k("s_mul_i32 s28, s16, 5")
    for i in range(4):
        k(f"""
s_lshl_b32 s29, s19, 2
s_add_u32 s29, s29, {i}           ; cbk
s_mul_i32 s30, s29, 13
s_lshr_b32 s30, s30, 6            ; seg
s_mul_i32 s31, s30, 35
s_add_u32 s31, s31, s29
s_add_u32 s31, s31, s28           ; gcb
s_mul_i32 s31, s31, 20
s_add_u32 s31, s31, s18
s_lshl_b32 s31, s31, 10
s_add_u32 s{20+i}, s31, {WS['WQKVF']}
s_mul_i32 s30, s18, 15
s_add_u32 s30, s30, s29
s_lshl_b32 s{24+i}, s30, 10
""")

    def dma(stage, nblk):
        for i in range(nblk):
            k(f"""s_add_u32 m0, s{24+i}, {(stage % 4) * SLOT}
s_add_u32 s32, s{20+i}, {stage * 2048}
buffer_load_dwordx4 v3, s[12:15], s32 offen lds""")

    def dma_any(stage):
        dma(stage, 3)
        l = k.label("s4")
        k(f"s_cmp_eq_u32 s19, 3\ns_cbranch_scc1 {l}")
        k(f"""s_add_u32 m0, s27, {(stage % 4) * SLOT}
s_add_u32 s32, s23, {stage * 2048}
buffer_load_dwordx4 v3, s[12:15], s32 offen lds
{l}:""")
    dma_any(0)
    dma_any(1)
    X = A0
    k(f"""
v_lshrrev_b32 v4, 3, v2
s_lshl_b32 s33, s3, 3
v_add_u32 v4, s33, v4
v_and_b32 v5, 7, v2
s_lshl_b32 s34, s17, 6            ; row0
v_add_u32 v6, s34, v4
v_mul_u32_u24 v6, 1280, v6
v_lshl_add_u32 v6, v5, 4, v6
v_mul_u32_u24 v7, {AST}, v4
v_lshl_add_u32 v7, v5, 4, v7
v_add_u32 v7, {ASTG}, v7
""")
    for i in range(10):
        k(f"buffer_load_dwordx4 v[{X+4*i}:{X+4*i+3}], v6, s[4:7], 0 offen offset:{i*128}")
    k(f"""
v_mov_b32 v{T}, 0
v_mov_b32 v{T+1}, 0
v_mov_b32 v{T+2}, 0
v_mov_b32 v{T+3}, 0
v_mov_b32 v{T+4}, {ONES_BF16}
""")
    for i in range(10):
        k(f"s_waitcnt vmcnt({9-i})")
        for j in range(4):
            r = X + 4 * i + j
            k(f"v_dot2c_f32_bf16 v{T + (j & 1)}, v{r}, v{T+4}")
            k(f"v_dot2c_f32_bf16 v{T + 2 + (j & 1)}, v{r}, v{r}")
    k(f"""
v_add_f32 v{T}, v{T}, v{T+1}
v_add_f32 v{T+2}, v{T+2}, v{T+3}
s_nop 1
v_add_f32_dpp v{T}, v{T}, v{T} quad_perm:[1,0,3,2] row_mask:0xf bank_mask:0xf
v_add_f32_dpp v{T+2}, v{T+2}, v{T+2} quad_perm:[1,0,3,2] row_mask:0xf bank_mask:0xf
s_nop 1
v_add_f32_dpp v{T}, v{T}, v{T} quad_perm:[2,3,0,1] row_mask:0xf bank_mask:0xf
v_add_f32_dpp v{T+2}, v{T+2}, v{T+2} quad_perm:[2,3,0,1] row_mask:0xf bank_mask:0xf
s_nop 1
v_add_f32_dpp v{T}, v{T}, v{T} row_half_mirror row_mask:0xf bank_mask:0xf
v_add_f32_dpp v{T+2}, v{T+2}, v{T+2} row_half_mirror row_mask:0xf bank_mask:0xf
v_mul_f32 v{T}, {f32bits(1.0/640)}, v{T}          ; mean
v_mul_f32 v{T+2}, {f32bits(1.0/640)}, v{T+2}      ; E[x^2]
v_fma_f32 v{T+2}, -v{T}, v{T}, v{T+2}             ; var
v_max_f32 v{T+2}, 0, v{T+2}
v_add_f32 v{T+2}, {f32bits(1e-5)}, v{T+2}
v_rsq_f32 v{T+2}, v{T+2}                          ; rstd
s_nop 0
v_mul_f32 v{T+3}, v{T}, v{T+2}
v_sub_f32 v{T+3}, 0, v{T+3}                       ; -mean*rstd
""")
    for i in range(10):
        for j in range(4):
            r = X + 4 * i + j
            k(f"""v_lshlrev_b32 v{T+6}, 16, v{r}
v_and_b32 v{T+7}, 0xffff0000, v{r}
v_fma_f32 v{T+6}, v{T+6}, v{T+2}, v{T+3}
v_fma_f32 v{T+7}, v{T+7}, v{T+2}, v{T+3}
v_cvt_pk_bf16_f32 v{r}, v{T+6}, v{T+7}""")
        k(f"ds_write_b128 v7, v[{X+4*i}:{X+4*i+3}] offset:{i*128}")
    k(f"""
s_waitcnt lgkmcnt(0)
s_barrier
v_and_b32 v4, 15, v2
s_lshl_b32 s33, s18, 5
v_add_u32 v4, s33, v4
v_mul_u32_u24 v4, {AST}, v4
v_lshrrev_b32 v5, 4, v2
v_lshl_add_u32 v4, v5, 3, v4
v_add_u32 v4, {ASTG}, v4
v_add_u32 v5, {16*AST}, v4
""")
    n = 0
    for rb in range(2):
        for ks in range(20):
            r = A0 + (rb * 20 + ks) * 4
            k(f"ds_read2_b64 v[{r}:{r+3}], v{4+rb} offset0:{ks*8} offset1:{ks*8+4}")
            n += 1
            if n % 12 == 0:
                k("s_waitcnt lgkmcnt(4)")
    k("s_waitcnt lgkmcnt(0)\ns_barrier")
    dma_any(2)
    for i in range(32):
        k(f"v_mov_b32 v{ACC+i}, 0")
    k("""s_cmp_eq_u32 s19, 2
s_cbranch_scc1 L_qkv_v2
s_cmp_eq_u32 s19, 3
s_cbranch_scc1 L_qkv_v3""")

    def mainloop(orient):
        nb = len(orient)
        for st in range(10):
            infl = min(9 - st, 2)
            k(f"s_waitcnt vmcnt({infl*nb})\ns_barrier")
            if st + 3 < 10:
                dma(st + 3, nb)
            base = (st % 2) * SLOT
            areg = T + 8 + ((st % 4) // 2)
            for ksl in range(2):
                for i in range(nb):
                    r = BF + (ksl * 4 + i) * 4
                    k(f"ds_read_b128 v[{r}:{r+3}], v{areg} offset:{base + (ksl*15 + i)*1024}")
            for ksl in range(2):
                ks = st * 2 + ksl
                for i in range(nb):
                    k(f"s_waitcnt lgkmcnt({(1-ksl)*nb + nb-1-i})")
                    b = BF + (ksl * 4 + i) * 4
                    for rb in range(2):
                        a = A0 + (rb * 20 + ks) * 4
                        c = ACC + (rb * 4 + i) * 4
                        if orient[i] == 'B':
                            k(f"v_mfma_f32_16x16x32_bf16 v[{c}:{c+3}], v[{b}:{b+3}], v[{a}:{a+3}], v[{c}:{c+3}]")
                        else:
                            k(f"v_mfma_f32_16x16x32_bf16 v[{c}:{c+3}], v[{a}:{a+3}], v[{b}:{b+3}], v[{c}:{c+3}]")

    def epilogue(cg):
        k(f"""
s_lshl_b32 s35, s17, 1
s_add_u32 s35, s35, s18
s_lshl_b32 s36, s16, 2
s_mul_i32 s37, s36, {64*QT}
s_mul_i32 s38, s35, {QT}
s_add_u32 s37, s37, s38
s_add_u32 s37, s37, {WS['QF']}    ; Q base
s_mul_i32 s38, s36, {64*KVT}
s_mul_i32 s39, s35, {KVT}
s_add_u32 s38, s38, s39
s_add_u32 s38, s38, {WS['KV']}
v_and_b32 v4, 15, v2
v_lshrrev_b32 v5, 4, v2           ; g
""")
        nb = 4 if cg < 3 else 3
        for i in range(nb):
            cbk = 4 * cg + i
            seg, cbp = cbk // 5, cbk % 5
            if seg < 2:
                HS = 64 * (QT if seg == 0 else KVT)
                k(f"""
v_add_u32 v8, {4*cbp}, v5         ; col4
v_mul_u32_u24 v9, 13, v8
v_lshrrev_b32 v9, 6, v9           ; hl
v_mul_u32_u24 v10, 5, v9
v_sub_u32 v10, v8, v10            ; c
v_lshrrev_b32 v11, 1, v10
v_lshlrev_b32 v11, 9, v11         ; (c>>1)*512  (c=4 -> 1024)
v_and_b32 v12, 1, v10
v_lshl_add_u32 v11, v12, 3, v11
v_cmp_eq_u32 vcc, 4, v10
v_mov_b32 v12, 4
v_mov_b32 v13, 3
v_cndmask_b32 v12, v12, v13, vcc
s_mov_b32 s40, {HS}
v_mul_lo_u32 v9, v9, s40
v_add_u32 v11, v11, v9
v_lshlrev_b32 v13, v12, v4
v_add_u32 v13, v13, v11
v_lshlrev_b32 v14, v12, 16
v_add_u32 v14, v14, v13
""")
                for rb in range(2):
                    c = ACC + (rb * 4 + i) * 4
                    if seg == 0:
                        for j in range(4):
                            k(f"v_mul_f32 v{c+j}, {QSCALE}, v{c+j}")
                    k(f"""v_cvt_pk_bf16_f32 v{16+2*rb}, v{c}, v{c+1}
v_cvt_pk_bf16_f32 v{17+2*rb}, v{c+2}, v{c+3}
buffer_store_dwordx2 v[{16+2*rb}:{17+2*rb}], v{13+rb}, s[12:15], s{37 if seg == 0 else 38} offen""")
            else:
                k(f"""
v_add_u32 v8, {16*cbp}, v4        ; n
v_mul_u32_u24 v9, 205, v8
v_lshrrev_b32 v9, 12, v9          ; hl
v_mul_u32_u24 v10, 20, v9
v_sub_u32 v10, v8, v10            ; d
v_and_b32 v11, 1, v5
v_mul_u32_u24 v11, 21, v11
v_add_u32 v11, v11, v10
v_lshlrev_b32 v11, 4, v11
v_lshrrev_b32 v12, 1, v5
v_lshl_add_u32 v11, v12, 3, v11
s_mov_b32 s40, {64*KVT}
v_mul_lo_u32 v9, v9, s40
v_add_u32 v13, v11, v9
v_add_u32 v13, 1536, v13
v_add_u32 v14, 672, v13
""")
                for rb in range(2):
                    c = ACC + (rb * 4 + i) * 4
                    k(f"""v_cvt_pk_bf16_f32 v{16+2*rb}, v{c}, v{c+1}
v_cvt_pk_bf16_f32 v{17+2*rb}, v{c+2}, v{c+3}
buffer_store_dwordx2 v[{16+2*rb}:{17+2*rb}], v{13+rb}, s[12:15], s38 offen""")
        if cg == 3:
            k(f"""
v_and_b32 v8, 31, v2
v_lshrrev_b32 v9, 5, v2
s_mov_b32 s40, {64*KVT}
v_mul_lo_u32 v9, v9, s40
v_lshl_add_u32 v9, v8, 3, v9
v_add_u32 v9, 1280, v9
v_add_u32 v10, {2*64*KVT}, v9
v_mov_b32 v20, {ONES_BF16}
v_mov_b32 v21, 0
buffer_store_dwordx2 v[20:21], v9, s[12:15], s38 offen
buffer_store_dwordx2 v[20:21], v10, s[12:15], s38 offen
v_and_b32 v8, 3, v2               ; grp*2 + h'
v_bfe_u32 v9, v2, 2, 2            ; hl
v_mul_lo_u32 v9, v9, s40
v_lshrrev_b32 v10, 1, v8
v_mul_u32_u24 v10, 672, v10
v_and_b32 v11, 1, v8
v_mul_u32_u24 v11, {21*16}, v11
v_add3_u32 v9, v9, v10, v11
v_add_u32 v9, {1536 + 20*16}, v9
v_mov_b32 v24, {ONES_BF16}
v_mov_b32 v25, {ONES_BF16}
v_mov_b32 v26, {ONES_BF16}
v_mov_b32 v27, {ONES_BF16}
buffer_store_dwordx4 v[24:27], v9, s[12:15], s38 offen
""")
        k("s_endpgm")

    def setaddr():
        pass
    k(f"s_lshl_b32 s33, s19, 12\nv_add_u32 v{T+8}, s33, v3\nv_add_u32 v{T+9}, {2*SLOT}, v{T+8}")
    mainloop("BBBB")
    k("s_cmp_eq_u32 s19, 1\ns_cbranch_scc1 L_qkv_e1")
    epilogue(0)
    k("L_qkv_e1:")
    epilogue(1)
    k("L_qkv_v2:")
    k(f"s_lshl_b32 s33, s19, 12\nv_add_u32 v{T+8}, s33, v3\nv_add_u32 v{T+9}, {2*SLOT}, v{T+8}")
    mainloop("BBAA")
    epilogue(2)
    k("L_qkv_v3:")
    k(f"s_lshl_b32 s33, s19, 12\nv_add_u32 v{T+8}, s33, v3\nv_add_u32 v{T+9}, {2*SLOT}, v{T+8}")
    mainloop("AAA")
    epilogue(3)
    k("L_qkv_end:\ns_endpgm")
    return k, 256, 512, LDS


def gen_attn():
    k = Kern("attn_kernel", 160)
    SLOT = 49152
    LDS = 3 * SLOT
    Q1 = 8
    Q2 = 16
    KF = 20
    VF = 36
    SA, SB = 52, 68
    PA, PB = 84, 92
    OA, OB = 100, 116
    AC = 132
    T = 140
    k(f"""
s_cmp_ge_u32 s2, 256
s_cbranch_scc1 L_attn_end
s_load_dwordx2 s[12:13], s[0:1], {ARG['ws']}
v_lshrrev_b32 v1, 6, v0
v_and_b32 v2, 63, v0              ; lane
s_and_b32 s16, s2, 7              ; xcd
v_readfirstlane_b32 s3, v1        ; wave
s_lshr_b32 s17, s2, 3             ; idx 0..31
s_lshr_b32 s18, s17, 3
s_lshl_b32 s19, s16, 2
s_add_u32 s18, s18, s19           ; head
s_and_b32 s19, s17, 7
s_and_b32 s20, s3, 3              ; q group
s_lshr_b32 s21, s3, 2
v_lshlrev_b32 v3, 4, v2           ; lane*16
s_waitcnt lgkmcnt(0)
s_and_b32 s13, s13, 0xffff
s_mov_b32 s14, {WS_TOTAL}
s_mov_b32 s15, 0x00020000
s_mul_i32 s22, s18, {64*KVT}
s_add_u32 s22, s22, {WS['KV']}
s_mul_i32 s23, s3, 6144
s_add_u32 s24, s22, s23
""")

    def dma_round(r_static=None, sreg=None):
        slot = (r_static % 3) * SLOT
        for i in range(6):
            k(f"""s_add_u32 m0, s23, {slot + i*1024}
s_add_u32 s25, s24, {r_static*16*KVT + i*1024}
buffer_load_dwordx4 v3, s[12:15], s25 offen lds""")
    dma_round(0)
    k(f"""
s_lshl_b32 s26, s19, 3
s_lshl_b32 s27, s20, 1
s_add_u32 s26, s26, s27
s_mul_i32 s27, s18, {64*QT}
s_mul_i32 s28, s26, {QT}
s_add_u32 s27, s27, s28
s_add_u32 s27, s27, {WS['QF']}
v_lshlrev_b32 v4, 3, v2           ; lane*8
buffer_load_dwordx4 v[{Q1}:{Q1+3}], v3, s[12:15], s27 offen
buffer_load_dwordx4 v[{Q1+4}:{Q1+7}], v3, s[12:15], s27 offen offset:{QT}
buffer_load_dwordx2 v[{Q2}:{Q2+1}], v4, s[12:15], s27 offen offset:1024
buffer_load_dwordx2 v[{Q2+2}:{Q2+3}], v4, s[12:15], s27 offen offset:{QT+1024}
""")
    dma_round(1)
    dma_round(2)
    k(f"""
s_mul_i32 s29, s21, {8*KVT}
v_add_u32 v{AC}, s29, v3          ; aK1
v_add_u32 v{AC+1}, s29, v4        ; aK2
v_and_b32 v5, 31, v2              ; d
v_lshrrev_b32 v6, 5, v2           ; h
v_subrev_u32 v7, 16, v5
v_cmp_lt_u32 vcc, 20, v5
v_cndmask_b32 v5, v5, v7, vcc     ; dmap
v_mul_u32_u24 v7, 21, v6
v_add_u32 v5, v5, v7
v_lshlrev_b32 v5, 4, v5
v_add_u32 v{AC+2}, s29, v5        ; aV
v_cmp_lt_u32 s[30:31], 31, v2
""")
    for i in range(16):
        k(f"v_mov_b32 v{OA+i}, 0\nv_mov_b32 v{OB+i}, 0")
    for i in range(8):
        k(f"v_mov_b32 v{PB+i}, 0\nv_mov_b32 v{VF+8+i}, 0")
    k(f"""
s_waitcnt vmcnt(12)
v_cndmask_b32 v{Q2}, v{Q2}, 0, s[30:31]
v_cndmask_b32 v{Q2+1}, v{Q2+1}, 0, s[30:31]
v_cndmask_b32 v{Q2+2}, v{Q2+2}, 0, s[30:31]
v_cndmask_b32 v{Q2+3}, v{Q2+3}, 0, s[30:31]
s_barrier
ds_read_b128 v[{KF}:{KF+3}], v3
ds_read_b64 v[{KF+4}:{KF+5}], v4 offset:1024
s_waitcnt lgkmcnt(0)
""")
    for (Sx, qi) in ((SA, 0), (SB, 1)):
        k(f"""v_mfma_f32_32x32x16_bf16 v[{Sx}:{Sx+15}], v[{KF}:{KF+3}], v[{Q1+4*qi}:{Q1+4*qi+3}], 0
v_mfma_f32_32x32x8_bf16 v[{Sx}:{Sx+15}], v[{KF+4}:{KF+5}], v[{Q2+2*qi}:{Q2+2*qi+1}], v[{Sx}:{Sx+15}]""")
    for (Sx, qi) in ((SA, 0), (SB, 1)):
        m = T + qi
        k(f"v_max3_f32 v{m}, v{Sx}, v{Sx+1}, v{Sx+2}")
        for j in range(3, 15, 2):
            k(f"v_max3_f32 v{m}, v{m}, v{Sx+j}, v{Sx+j+1}")
        k(f"v_max_f32 v{m}, v{m}, v{Sx+15}")
        k(f"""v_mov_b32 v{T+2}, v{m}
s_nop 1
v_permlane32_swap_b32 v{T+2}, v{m}
s_nop 1
v_max_f32 v{m}, v{m}, v{T+2}
v_cvt_pk_bf16_f32 v{T+3}, v{m}, v{m}
v_lshlrev_b32 v{T+3}, 16, v{T+3}
v_sub_f32 v{T+4}, v{T+3}, v{m}                ; -(m - m_hi)
v_sub_f32 v{T+3}, 0, v{T+3}                   ; -m_hi
v_cvt_pk_bf16_f32 v{T+3}, v{T+3}, v{T+4}
v_cndmask_b32 v{Q2+2*qi}, v{Q2+2*qi}, v{T+3}, s[30:31]
""")
    k(f"""
ds_read_b128 v[{KF}:{KF+3}], v{AC}
ds_read_b64 v[{KF+4}:{KF+5}], v{AC+1} offset:1024
ds_read_b128 v[{VF}:{VF+3}], v{AC+2} offset:1536
ds_read_b128 v[{VF+4}:{VF+7}], v{AC+2} offset:2208
s_mov_b32 s32, 0                  ; round
v_add_u32 v{AC+3}, {SLOT}, v{AC}
v_add_u32 v{AC+4}, {SLOT}, v{AC+1}
v_add_u32 v{AC+5}, {SLOT}, v{AC+2}
s_waitcnt lgkmcnt(0)
v_mfma_f32_32x32x16_bf16 v[{SA}:{SA+15}], v[{KF}:{KF+3}], v[{Q1}:{Q1+3}], 0
v_mfma_f32_32x32x8_bf16 v[{SA}:{SA+15}], v[{KF+4}:{KF+5}], v[{Q2}:{Q2+1}], v[{SA}:{SA+15}]
s_nop 7
L_attn_round:
""")

    def exps(Sx, Px):
        r = []
        for i in range(8):
            r += [f"v_exp_f32 v{Sx+2*i}, v{Sx+2*i}", f"v_exp_f32 v{Sx+2*i+1}, v{Sx+2*i+1}"]
            if i > 0:
                r += [f"v_cvt_pk_bf16_f32 v{Px+i-1}, v{Sx+2*i-2}, v{Sx+2*i-1}"]
        r += [f"v_cvt_pk_bf16_f32 v{Px+7}, v{Sx+14}, v{Sx+15}"]
        return r

    def interleave(e, items):
        out = []
        it = sorted(items, key=lambda x: x[0])
        p = 0
        for idx, ins in enumerate(e):
            while p < len(it) and it[p][0] <= idx:
                out += it[p][1]
                p += 1
            out.append(ins)
        while p < len(it):
            out += it[p][1]
            p += 1
        return out

    for t in range(8):
        kc, kn = KF + 8 * (t & 1), KF + 8 * ((t + 1) & 1)
        vc, vp = VF + 8 * (t & 1), VF + 8 * ((t + 1) & 1)
        if t < 7:
            na, off = AC, (t + 1) * KVT
        else:
            na, off = AC + 3, 0
        pre = []
        if t == 7:
            l = k.label("nodma")
            pre = ["s_waitcnt vmcnt(0)", "s_barrier", "s_cmp_eq_u32 s32, 1", f"s_cbranch_scc0 {l}"]
            k("\n".join(pre))
            dma_round(3)
            k(f"{l}:")
        e = exps(SA, PA)
        items = [
            (0, [f"v_mfma_f32_32x32x16_bf16 v[{SB}:{SB+15}], v[{kc}:{kc+3}], v[{Q1+4}:{Q1+7}], 0"]),
            (1, [f"ds_read_b128 v[{kn}:{kn+3}], v{na} offset:{off}",
                 f"ds_read_b64 v[{kn+4}:{kn+5}], v{na+1} offset:{off+1024}"]),
            (4, [f"v_mfma_f32_32x32x8_bf16 v[{SB}:{SB+15}], v[{kc+4}:{kc+5}], v[{Q2+2}:{Q2+3}], v[{SB}:{SB+15}]"]),
            (10, [f"v_mfma_f32_32x32x16_bf16 v[{OB}:{OB+15}], v[{vp}:{vp+3}], v[{PB}:{PB+3}], v[{OB}:{OB+15}]"]),
            (16, [f"v_mfma_f32_32x32x16_bf16 v[{OB}:{OB+15}], v[{vp+4}:{vp+7}], v[{PB+4}:{PB+7}], v[{OB}:{OB+15}]"]),
            (18, [f"ds_read_b128 v[{vp}:{vp+3}], v{na+2} offset:{off+1536}",
                  f"ds_read_b128 v[{vp+4}:{vp+7}], v{na+2} offset:{off+2208}"]),
        ]
        k("\n".join(interleave(e, items)))
        e = exps(SB, PB)
        items = [
            (0, ["s_waitcnt lgkmcnt(2)",
                 f"v_mfma_f32_32x32x16_bf16 v[{SA}:{SA+15}], v[{kn}:{kn+3}], v[{Q1}:{Q1+3}], 0"]),
            (4, [f"v_mfma_f32_32x32x8_bf16 v[{SA}:{SA+15}], v[{kn+4}:{kn+5}], v[{Q2}:{Q2+1}], v[{SA}:{SA+15}]"]),
            (10, [f"v_mfma_f32_32x32x16_bf16 v[{OA}:{OA+15}], v[{vc}:{vc+3}], v[{PA}:{PA+3}], v[{OA}:{OA+15}]"]),
            (16, [f"v_mfma_f32_32x32x16_bf16 v[{OA}:{OA+15}], v[{vc+4}:{vc+7}], v[{PA+4}:{PA+7}], v[{OA}:{OA+15}]"]),
            (22, ["s_waitcnt lgkmcnt(0)"]),
        ]
        k("\n".join(interleave(e, items)))
    k(f"""
s_add_u32 s32, s32, 1
v_mov_b32 v{AC}, v{AC+3}
v_mov_b32 v{AC+1}, v{AC+4}
v_mov_b32 v{AC+2}, v{AC+5}
s_mov_b32 s33, {SLOT}
s_cmp_eq_u32 s32, 2
s_cselect_b32 s33, {-2*SLOT & 0xffffffff}, s33
v_add_u32 v{AC+3}, s33, v{AC+3}
v_add_u32 v{AC+4}, s33, v{AC+4}
v_add_u32 v{AC+5}, s33, v{AC+5}
s_cmp_lt_u32 s32, 4
s_cbranch_scc1 L_attn_round
""")
    vl = VF + 8
    k(f"""
v_mfma_f32_32x32x16_bf16 v[{OB}:{OB+15}], v[{vl}:{vl+3}], v[{PB}:{PB+3}], v[{OB}:{OB+15}]
v_mfma_f32_32x32x16_bf16 v[{OB}:{OB+15}], v[{vl+4}:{vl+7}], v[{PB+4}:{PB+7}], v[{OB}:{OB+15}]
""")
    k(f"""
s_lshl_b32 s34, s20, 1
s_add_u32 s34, s34, s21           ; qg*2 + c
s_mul_i32 s35, s34, 3072
s_xor_b32 s36, s34, 1
s_mul_i32 s36, s36, 3072
v_add_u32 v4, s35, v3
v_add_u32 v4, {SLOT}, v4
v_add_u32 v5, s36, v3
v_add_u32 v5, {SLOT}, v5
s_cmp_eq_u32 s21, 0
s_cbranch_scc0 L_attn_c1
s_nop 7
s_nop 7
""")
    for j in range(3):
        k(f"ds_write_b128 v4, v[{OB+4*j}:{OB+4*j+3}] offset:{j*1024}")
    k("s_branch L_attn_m\nL_attn_c1:")
    for j in range(3):
        k(f"ds_write_b128 v4, v[{OA+4*j}:{OA+4*j+3}] offset:{j*1024}")
    for j in range(12):
        k(f"v_mov_b32 v{OA+j}, v{OB+j}")
    k(f"""L_attn_m:
s_waitcnt lgkmcnt(0)
s_barrier
""")
    for j in range(3):
        k(f"ds_read_b128 v[{SA+4*j}:{SA+4*j+3}], v5 offset:{j*1024}")
    k("s_waitcnt lgkmcnt(0)")
    for j in range(12):
        k(f"v_add_f32 v{OA+j}, v{OA+j}, v{SA+j}")
    k(f"""
v_mov_b32 v{T}, v{OA+8}
v_mov_b32 v{T+1}, v{OA+8}
s_nop 1
v_permlane32_swap_b32 v{T}, v{T+1}
s_nop 1
v_cndmask_b32 v{T}, v{T+1}, v{OA+8}, s[30:31]
v_rcp_f32 v{T}, v{T}
s_nop 0
""")
    for j in range(12):
        k(f"v_mul_f32 v{OA+j}, v{OA+j}, v{T}")
    for j in range(6):
        k(f"v_cvt_pk_bf16_f32 v{SB+j}, v{OA+2*j}, v{OA+2*j+1}")
    k(f"""
s_lshl_b32 s34, s19, 8
s_lshl_b32 s35, s20, 6
s_add_u32 s34, s34, s35
s_lshl_b32 s35, s21, 5
s_add_u32 s34, s34, s35           ; q base
v_and_b32 v4, 31, v2
v_add_u32 v4, s34, v4             ; q
v_lshrrev_b32 v5, 4, v4           ; rowblk
v_mul_u32_u24 v5, {20*1024}, v5
v_and_b32 v4, 15, v4
v_lshl_add_u32 v5, v4, 4, v5      ; rowblk*20480 + (q&15)*16
v_lshrrev_b32 v6, 5, v2           ; hh
s_mul_i32 s35, s18, 5
v_add_u32 v6, s35, v6             ; k4 for i=0
""")
    for i in range(3):
        k(f"""
v_add_u32 v7, {2*i}, v6           ; k4
v_lshrrev_b32 v8, 3, v7
v_lshlrev_b32 v8, 10, v8          ; ks*1024
v_and_b32 v9, 3, v7
v_lshl_add_u32 v8, v9, 8, v8      ; + g*256
v_bfe_u32 v9, v7, 2, 1
v_lshl_add_u32 v8, v9, 3, v8      ; + half*8
v_add_u32 v8, v8, v5
""")
        if i == 2:
            k("s_mov_b32 exec_lo, -1\ns_mov_b32 exec_hi, 0")
        k(f"buffer_store_dwordx2 v[{SB+2*i}:{SB+2*i+1}], v8, s[12:15], s37 offen" .replace("s37", "s38"))
    k("L_attn_end:\ns_endpgm")
    idx = next(i for i, l in enumerate(k.lines) if 's_mul_i32 s35, s18, 5' in l)
    k.lines.insert(idx, f"  s_mov_b32 s38, {WS['OF']}")
    return k, 256, 512, LDS


def gen_rowgemm(name, KS, srcA, srcB, final):
    k = Kern(name, 128, nagpr=256)
    nst = 5 if KS == 20 else 14
    ring = 5 if KS == 20 else 7
    ACC = 8
    T = 88
    k(f"""
s_cmp_ge_u32 s2, 256
s_cbranch_scc1 L_{name}_end
s_load_dwordx2 s[12:13], s[0:1], {ARG['ws']}
s_load_dwordx2 s[4:5], s[0:1], {ARG['out'] if final else ARG['x']}
v_lshrrev_b32 v1, 6, v0
v_and_b32 v2, 63, v0
s_and_b32 s16, s2, 7              ; xcd
v_readfirstlane_b32 s3, v1        ; wave
s_lshr_b32 s17, s2, 3             ; 0..31
s_and_b32 s18, s16, 1
s_lshl_b32 s18, s18, 2
s_and_b32 s19, s17, 3
s_add_u32 s18, s18, s19
s_lshr_b32 s19, s16, 1
s_lshl_b32 s19, s19, 3
s_lshr_b32 s20, s17, 2
s_add_u32 s19, s19, s20
v_lshlrev_b32 v3, 4, v2
s_waitcnt lgkmcnt(0)
s_and_b32 s13, s13, 0xffff
s_mov_b32 s14, {WS_TOTAL}
s_mov_b32 s15, 0x00020000
s_and_b32 s5, s5, 0xffff
s_mov_b32 s6, {S*D*2}
s_mov_b32 s7, 0x00020000
""")
    if KS == 20:
        k("s_mul_i32 s21, s3, 5\ns_mov_b32 s22, 5")
    else:
        k("""s_mul_i32 s21, s3, 14
s_cmp_eq_u32 s3, 3
s_cselect_b32 s22, 1, 0
s_sub_u32 s21, s21, s22           ; 0,14,28,41
s_cmp_ge_u32 s3, 2
s_cselect_b32 s22, 13, 14""")
    k(f"""
s_mul_i32 s23, s19, {4*KS}
s_add_u32 s23, s23, s21
s_lshl_b32 s23, s23, 10
s_add_u32 s23, s23, {WS[srcA]}
s_mul_i32 s24, s18, {5*KS}
s_add_u32 s24, s24, s21
s_lshl_b32 s24, s24, 10
s_add_u32 s24, s24, {WS[srcB]}
s_mov_b32 s25, 0
""")

    def loads(slot):
        R = slot * 36
        k(f"""s_cmp_lt_u32 s25, s22
s_cselect_b32 s26, s23, 0x7ff00000
s_cselect_b32 s27, s24, 0x7ff00000""")
        for rb in range(4):
            if rb:
                k(f"s_add_u32 s26, s26, {KS*1024}")
            k(f"buffer_load_dwordx4 a[{R+4*rb}:{R+4*rb+3}], v3, s[12:15], s26 offen")
        for cb in range(5):
            if cb:
                k(f"s_add_u32 s27, s27, {KS*1024}")
            k(f"buffer_load_dwordx4 a[{R+16+4*cb}:{R+16+4*cb+3}], v3, s[12:15], s27 offen")
        k("s_add_u32 s23, s23, 1024\ns_add_u32 s24, s24, 1024\ns_add_u32 s25, s25, 1")

    def compute(slot):
        R = slot * 36
        for rb in range(4):
            for cb in range(5):
                c = ACC + (rb * 5 + cb) * 4
                k(f"v_mfma_f32_16x16x32_bf16 v[{c}:{c+3}], a[{R+16+4*cb}:{R+16+4*cb+3}], a[{R+4*rb}:{R+4*rb+3}], v[{c}:{c+3}]")
    for s in range(ring):
        loads(s)
    for i in range(80):
        k(f"v_mov_b32 v{ACC+i}, 0")
    if nst == ring:
        for s in range(ring):
            k(f"s_waitcnt vmcnt({9*(ring-1-s)})")
            compute(s)
    else:
        k(f"s_mov_b32 s28, 0\nL_{name}_loop:")
        for s in range(ring):
            k(f"s_waitcnt vmcnt({9*(ring-1)})")
            compute(s)
            loads(s)
        k(f"s_add_u32 s28, s28, 1\ns_cmp_lt_u32 s28, 2\ns_cbranch_scc1 L_{name}_loop")
    k("s_nop 7")
    for rb in range(4):
        l = k.label("skipw")
        k(f"""s_cmp_eq_u32 s3, {rb}
s_cbranch_scc1 {l}
s_sub_u32 s29, s3, {rb+1}
s_and_b32 s29, s29, 3
s_add_u32 s29, s29, {rb*3}
s_mul_i32 s29, s29, 5120
v_add_u32 v4, s29, v3""")
        for cb in range(5):
            c = ACC + (rb * 5 + cb) * 4
            k(f"ds_write_b128 v4, v[{c}:{c+3}] offset:{cb*1024}")
        k(f"{l}:")
    for rb in range(4):
        l = k.label("own")
        k(f"s_cmp_eq_u32 s3, {rb}\ns_cbranch_scc0 {l}")
        for i in range(20):
            k(f"v_mov_b32 v{T+i}, v{ACC+rb*20+i}")
        k(f"{l}:")
    k(f"""s_waitcnt lgkmcnt(0)
s_barrier
s_mul_i32 s29, s3, {3*5120}
v_add_u32 v4, s29, v3""")
    for sl in range(3):
        for cb in range(5):
            r = ACC + (sl * 5 + cb) * 4
            k(f"ds_read_b128 v[{r}:{r+3}], v4 offset:{sl*5120 + cb*1024}")
    k(f"""
v_and_b32 v5, 15, v2
v_lshrrev_b32 v6, 4, v2
s_lshl_b32 s30, s19, 6
s_lshl_b32 s31, s3, 4
s_add_u32 s30, s30, s31
v_add_u32 v7, s30, v5             ; row
v_mul_u32_u24 v{T+20}, 1280, v7
s_mul_i32 s31, s18, 160
v_lshl_add_u32 v{T+20}, v6, 3, v{T+20}
v_add_u32 v{T+20}, s31, v{T+20}
s_lshl_b32 s32, s19, 2
s_add_u32 s32, s32, s3
s_mul_i32 s32, s32, {20*1024}
s_add_u32 s32, s32, {WS['HF']}
s_mul_i32 s33, s18, 5
""")
    R = T + 22
    for cb in range(5):
        k(f"""s_add_u32 s34, s33, {cb}
s_lshr_b32 s35, s34, 1
s_lshl_b32 s35, s35, 10
s_and_b32 s34, s34, 1
s_lshl_b32 s34, s34, 3
s_add_u32 s35, s35, s34
s_add_u32 s{40+cb}, s35, s32""")
        if final:
            k(f"buffer_load_dwordx2 v[{R+2*cb}:{R+2*cb+1}], v3, s[12:15], s{40+cb} offen")
        else:
            k(f"buffer_load_dwordx2 v[{R+2*cb}:{R+2*cb+1}], v{T+20}, s[4:7], 0 offen offset:{cb*32}")
    k("s_waitcnt lgkmcnt(0)")
    for sl in range(3):
        for i in range(20):
            k(f"v_add_f32 v{T+i}, v{T+i}, v{ACC+sl*20+i}")
    k("s_waitcnt vmcnt(0)")
    A = ACC
    for cb in range(5):
        for j in range(2):
            a0, a1 = T + cb * 4 + 2 * j, T + cb * 4 + 2 * j + 1
            rr = R + 2 * cb + j
            k(f"""v_cvt_pk_bf16_f32 v{A}, v{a0}, v{a1}
v_lshlrev_b32 v{a0}, 16, v{A}
v_and_b32 v{a1}, 0xffff0000, v{A}
v_lshlrev_b32 v{A+1}, 16, v{rr}
v_and_b32 v{A+2}, 0xffff0000, v{rr}
v_add_f32 v{a0}, v{a0}, v{A+1}
v_add_f32 v{a1}, v{a1}, v{A+2}
v_cvt_pk_bf16_f32 v{rr}, v{a0}, v{a1}""")
    if final:
        for cb in range(5):
            k(f"buffer_store_dwordx2 v[{R+2*cb}:{R+2*cb+1}], v{T+20}, s[4:7], 0 offen offset:{cb*32}")
    else:
        for cb in range(5):
            k(f"buffer_store_dwordx2 v[{R+2*cb}:{R+2*cb+1}], v3, s[12:15], s{40+cb} offen")
        k(f"v_mov_b32 v{A}, 0\nv_mov_b32 v{A+1}, 0\nv_mov_b32 v{A+2}, {ONES_BF16}")
        for i in range(10):
            k(f"v_dot2c_f32_bf16 v{A}, v{R+i}, v{A+2}\nv_dot2c_f32_bf16 v{A+1}, v{R+i}, v{R+i}")
        k(f"""
ds_swizzle_b32 v{A+3}, v{A} offset:0x401F
ds_swizzle_b32 v{A+4}, v{A+1} offset:0x401F
s_waitcnt lgkmcnt(0)
v_add_f32 v{A}, v{A}, v{A+3}
v_add_f32 v{A+1}, v{A+1}, v{A+4}
v_mov_b32 v{A+3}, v{A}
v_mov_b32 v{A+4}, v{A+1}
s_nop 1
v_permlane32_swap_b32 v{A+3}, v{A}
v_permlane32_swap_b32 v{A+4}, v{A+1}
s_nop 1
v_add_f32 v{A}, v{A}, v{A+3}
v_add_f32 v{A+1}, v{A+1}, v{A+4}
v_lshlrev_b32 v4, 6, v7           ; row*64
s_lshl_b32 s34, s18, 3
s_add_u32 s34, s34, {WS['STATS']}
v_cmp_gt_u32 vcc, 16, v2
s_and_saveexec_b64 s[36:37], vcc
buffer_store_dwordx2 v[{A}:{A+1}], v4, s[12:15], s34 offen
""")
    k(f"L_{name}_end:\ns_endpgm")
    return k, 256, 256, 12 * 5120


def gen_gateup():
    k = Kern("gateup_kernel", 124, nagpr=160)
    SLOT = 40960
    CS = 3 * SLOT
    LDS = CS + 1024
    ACC = 8
    BF = 40
    MR = 72
    CSR = 76
    T = 84
    k(f"""
s_cmp_ge_u32 s2, 256
s_cbranch_scc1 L_gu_end
s_load_dwordx2 s[12:13], s[0:1], {ARG['ws']}
v_lshrrev_b32 v1, 6, v0
v_and_b32 v2, 63, v0
s_and_b32 s16, s2, 7              ; xcd
v_readfirstlane_b32 s3, v1        ; wave
s_lshr_b32 s17, s2, 3             ; 0..31
s_and_b32 s18, s16, 3
s_lshl_b32 s18, s18, 2
s_and_b32 s19, s17, 3
s_add_u32 s18, s18, s19           ; slice 0..15
s_lshr_b32 s19, s16, 2
s_lshl_b32 s19, s19, 3
s_lshr_b32 s20, s17, 2
s_add_u32 s19, s19, s20
v_lshlrev_b32 v3, 4, v2
s_mul_i32 s21, s18, 7
s_sub_u32 s22, s18, 12
s_max_i32 s22, s22, 0
s_sub_u32 s21, s21, s22           ; fb0
s_cmp_ge_u32 s18, 12
s_cselect_b32 s22, 6, 7           ; nfb
s_waitcnt lgkmcnt(0)
s_and_b32 s13, s13, 0xffff
s_mov_b32 s14, {WS_TOTAL}
s_mov_b32 s15, 0x00020000
s_mul_i32 s23, s21, {20*1024}
s_and_b32 s24, s3, 1
s_mul_i32 s24, s24, 10240
s_add_u32 s23, s23, s24
s_mov_b32 s24, {WS['WGF']}
s_cmp_ge_u32 s3, 2
s_cselect_b32 s24, {WS['WUF']}, s24
s_add_u32 s23, s23, s24
s_mul_i32 s24, s3, 10240
s_mov_b32 s25, 0
s_mov_b32 s26, 0
""")

    def dma_block():
        l = k.label("nd")
        k(f"s_cmp_lt_u32 s25, s22\ns_cbranch_scc0 {l}\ns_add_u32 s27, s24, s26")
        for i in range(10):
            k(f"""s_add_u32 m0, s27, {i*1024}
s_add_u32 s28, s23, {i*1024}
buffer_load_dwordx4 v3, s[12:15], s28 offen lds""")
        k(f"""{l}:
s_add_u32 s23, s23, {20*1024}
s_add_u32 s25, s25, 1
s_add_u32 s26, s26, {SLOT}
s_cmp_eq_u32 s26, {3*SLOT}
s_cselect_b32 s26, 0, s26""")
    dma_block()
    k(f"""
s_lshl_b32 s29, s19, 3
s_lshl_b32 s30, s3, 1
s_add_u32 s29, s29, s30           ; rb0
s_mul_i32 s30, s29, {20*1024}
s_add_u32 s30, s30, {WS['HF']}
""")
    for i in range(40):
        k(f"buffer_load_dwordx4 a[{4*i}:{4*i+3}], v3, s[12:15], s30 offen" + ("" if i % 4 == 0 else f" offset:{(i%4)*1024}"))
        if i % 4 == 3:
            k("s_add_u32 s30, s30, 4096")
    k(f"""
v_and_b32 v4, 15, v2
v_lshrrev_b32 v5, 4, v2
s_lshl_b32 s31, s29, 4
v_add_u32 v6, s31, v4
v_lshlrev_b32 v6, 6, v6
v_lshl_add_u32 v6, v5, 4, v6
s_mov_b32 s31, {WS['STATS']}
buffer_load_dwordx4 v[{T}:{T+3}], v6, s[12:15], s31 offen
buffer_load_dwordx4 v[{T+4}:{T+7}], v6, s[12:15], s31 offen offset:1024
; colsums: thread t<224 : mat=t/112, f = fb0*16 + t%112
v_cmp_le_u32 vcc, 112, v0
v_subrev_u32 v7, 112, v0
v_cndmask_b32 v7, v0, v7, vcc
v_mov_b32 v8, 0
v_mov_b32 v9, 1728
v_cndmask_b32 v8, v8, v9, vcc
v_add_u32 v7, v7, v8
s_lshl_b32 s31, s21, 4
v_add_u32 v7, s31, v7
v_lshlrev_b32 v7, 2, v7
s_mov_b32 s31, {WS['CSP']}
""")
    for i in range(20):
        k(f"buffer_load_dword v{T+8+i}, v7, s[12:15], s31 offen")
        k(f"s_add_u32 s31, s31, {2*1728*4}")
    dma_block()
    dma_block()
    k("s_waitcnt vmcnt(20)")
    for rb in range(2):
        a = T + 4 * rb
        k(f"""v_add_f32 v{a}, v{a}, v{a+2}
v_add_f32 v{a+1}, v{a+1}, v{a+3}
ds_swizzle_b32 v{a+2}, v{a} offset:0x401F
ds_swizzle_b32 v{a+3}, v{a+1} offset:0x401F
s_waitcnt lgkmcnt(0)
v_add_f32 v{a}, v{a}, v{a+2}
v_add_f32 v{a+1}, v{a+1}, v{a+3}
v_mov_b32 v{a+2}, v{a}
v_mov_b32 v{a+3}, v{a+1}
s_nop 1
v_permlane32_swap_b32 v{a+2}, v{a}
v_permlane32_swap_b32 v{a+3}, v{a+1}
s_nop 1
v_add_f32 v{a}, v{a}, v{a+2}
v_add_f32 v{a+1}, v{a+1}, v{a+3}
v_mul_f32 v{a}, {f32bits(1.0/640)}, v{a}
v_mul_f32 v{a+1}, {f32bits(1.0/640)}, v{a+1}
v_fma_f32 v{a+1}, -v{a}, v{a}, v{a+1}
v_max_f32 v{a+1}, 0, v{a+1}
v_add_f32 v{a+1}, {f32bits(1e-5)}, v{a+1}
v_rsq_f32 v{MR+rb}, v{a+1}
s_nop 0
v_mul_f32 v{MR+2+rb}, v{a}, v{MR+rb}""")
    for i in range(1, 20):
        k(f"v_add_f32 v{T+8}, v{T+8}, v{T+8+i}")
    k(f"""
v_lshlrev_b32 v7, 2, v0
v_cmp_gt_u32 vcc, 224, v0
s_and_saveexec_b64 s[36:37], vcc
v_add_u32 v7, {CS}, v7
ds_write_b32 v7, v{T+8}
s_mov_b64 exec, s[36:37]
v_lshlrev_b32 v5, 4, v5
v_add_u32 v5, {CS}, v5
s_mul_i32 s33, s29, {54*1024}
s_add_u32 s33, s33, {WS['ACT']}
s_mov_b32 s34, 0
s_mov_b32 s35, 0
v_mov_b32 v6, v3
""")

    def epi(accset):
        r = []
        for rb in range(2):
            g = ACC + accset * 16 + rb * 4
            u = ACC + accset * 16 + (2 + rb) * 4
            t = T + rb * 8
            for j in range(4):
                r += [f"v_mul_f32 v{t}, v{MR+2+rb}, v{CSR+j}",
                      f"v_fma_f32 v{g+j}, v{g+j}, v{MR+rb}, -v{t}",
                      f"v_mul_f32 v{t+1}, v{MR+2+rb}, v{CSR+4+j}",
                      f"v_fma_f32 v{u+j}, v{u+j}, v{MR+rb}, -v{t+1}",
                      f"v_mul_f32 v{t+2}, {f32bits(-math.log2(math.e))}, v{g+j}",
                      f"v_exp_f32 v{t+2}, v{t+2}",
                      f"v_mul_f32 v{u+j}, v{u+j}, v{g+j}",
                      f"v_add_f32 v{t+2}, 1.0, v{t+2}",
                      f"v_rcp_f32 v{t+2}, v{t+2}",
                      "s_nop 0",
                      f"v_mul_f32 v{u+j}, v{u+j}, v{t+2}"]
            r += [f"v_cvt_pk_bf16_f32 v{t+4}, v{u}, v{u+1}",
                  f"v_cvt_pk_bf16_f32 v{t+5}, v{u+2}, v{u+3}",
                  f"buffer_store_dwordx2 v[{t+4}:{t+5}], v3, s[12:15], s{38+rb} offen"]
        return r

    def epi_setup(jreg_prev):
        return f"""s_add_u32 s37, s21, s36
s_lshr_b32 s38, s37, 1
s_lshl_b32 s38, s38, 10
s_and_b32 s37, s37, 1
s_lshl_b32 s37, s37, 3
s_add_u32 s38, s38, s37
s_add_u32 s38, s38, s33
s_add_u32 s39, s38, {54*1024}
s_lshl_b32 s37, s36, 6
v_add_u32 v{T+16}, s37, v5
ds_read_b128 v[{CSR}:{CSR+3}], v{T+16}
ds_read_b128 v[{CSR+4}:{CSR+7}], v{T+16} offset:448"""

    def block(accset, with_epi):
        k("s_waitcnt vmcnt(20)" if False else "s_nop 0")
        for i in range(16):
            k(f"v_mov_b32 v{ACC+accset*16+i}, 0")
        k("v_add_u32 v6, s35, v3")
        e = epi(accset ^ 1) if with_epi else []
        if with_epi:
            k("s_sub_u32 s36, s34, 1")
            k(epi_setup(None))
        def rd(ks):
            b = BF + (ks % 4) * 8
            return [f"ds_read_b128 v[{b}:{b+3}], v6 offset:{ks*1024}",
                    f"ds_read_b128 v[{b+4}:{b+7}], v6 offset:{20480 + ks*1024}"]
        for ks in range(3):
            k("\n".join(rd(ks)))
        per = (len(e) + 17) // 18
        for ks in range(20):
            if ks + 3 < 20:
                k("\n".join(rd(ks + 3)))
            outstanding = min(19 - ks, 3) * 2
            k(f"s_waitcnt lgkmcnt({outstanding})")
            b = BF + (ks % 4) * 8
            for mat in range(2):
                for rb in range(2):
                    c = ACC + accset * 16 + (mat * 2 + rb) * 4
                    a = (rb * 20 + ks) * 4
                    k(f"v_mfma_f32_16x16x32_bf16 v[{c}:{c+3}], v[{b+4*mat}:{b+4*mat+3}], a[{a}:{a+3}], v[{c}:{c+3}]")
            if ks >= 1 and e:
                k("\n".join(e[:per]))
                e = e[per:]
        if e:
            k("\n".join(e))

    def top(first):
        pass
    def iter_head(first=False):
        if first:
            k("s_waitcnt vmcnt(20)\ns_waitcnt lgkmcnt(0)\ns_barrier")
            return
        l0, l1 = k.label("w0"), k.label("w1")
        k(f"""s_add_u32 s36, s34, 1
s_cmp_lt_u32 s36, s22
s_cbranch_scc0 {l0}
s_waitcnt vmcnt(10)
s_branch {l1}
{l0}:
s_waitcnt vmcnt(0)
{l1}:
s_waitcnt lgkmcnt(0)
s_barrier""")

    def iter_tail():
        k(f"""s_add_u32 s34, s34, 1
s_add_u32 s35, s35, {SLOT}
s_cmp_eq_u32 s35, {3*SLOT}
s_cselect_b32 s35, 0, s35""")
    iter_head(True)
    block(0, False)
    iter_tail()
    k("L_gu_loop:")
    iter_head()
    dma_block()
    block(1, True)
    iter_tail()
    k("s_cmp_ge_u32 s34, s22\ns_cbranch_scc1 L_gu_fin1")
    iter_head()
    dma_block()
    block(0, True)
    iter_tail()
    k("s_cmp_lt_u32 s34, s22\ns_cbranch_scc1 L_gu_loop")
    k("s_sub_u32 s36, s34, 1")
    k(epi_setup(None))
    k("s_waitcnt lgkmcnt(0)\ns_nop 7")
    k("\n".join(epi(0)))
    k("s_endpgm")
    k("L_gu_fin1:")
    k("s_sub_u32 s36, s34, 1")
    k(epi_setup(None))
    k("s_waitcnt lgkmcnt(0)\ns_nop 7")
    k("\n".join(epi(1)))
    k("L_gu_end:\ns_endpgm")
    return k, 256, 256, LDS


HEADER = open("sequential_preLN__mha_block__swiglu_ffn__prompt.s.ref").read().split("; Override")[0].rstrip("\n").split("\n")


def build(verbose=False):
    ks = [gen_prep(), gen_qkv(), gen_attn(), gen_rowgemm("oproj_kernel", 20, "OF", "WOF", False), gen_gateup(),
          gen_rowgemm("down_kernel", 54, "ACT", "WDF", True)]
    kernels = [x[0] for x in ks]
    launches = [(x[0].name, x[1], x[2], x[3]) for x in ks]
    return build_file(HEADER, kernels, launches, verbose)


if __name__ == "__main__":
    txt = build(verbose="-v" in sys.argv)
    out = "sequential_preLN__mha_block__swiglu_ffn__prompt.s"
    open(out, "w").write(txt)
    print("wrote", out, len(txt), "bytes; WS_TOTAL", WS_TOTAL)
```

```python
import re

REG_RE = re.compile(r'(-?)(abs\()?\b([vsa])(\d+)\b|\b([vsa])\[(\d+):(\d+)\]')


def regs_of(tok):
    tok = tok.strip()
    out = []
    m = re.fullmatch(r'-?(?:abs\(|\|)?([vsa])\[(\d+):(\d+)\]\)?\|?', tok)
    if m:
        k, a, b = m.group(1), int(m.group(2)), int(m.group(3))
        return [(k, i) for i in range(a, b + 1)]
    m = re.fullmatch(r'-?(?:abs\(|\|)?([vsa])(\d+)\)?\|?', tok)
    if m:
        return [(m.group(1), int(m.group(2)))]
    if tok == 'vcc':
        return [('vcc', 0)]
    if tok in ('vcc_lo', 'vcc_hi'):
        return [('vcc', 0)]
    if tok == 'exec':
        return [('exec', 0)]
    if tok == 'm0':
        return [('m0', 0)]
    return out


TRANS = ('v_exp_', 'v_log_', 'v_rcp_', 'v_rsq_', 'v_sqrt_', 'v_sin_', 'v_cos_')


def mfma_passes(mn):
    if '32x32x16' in mn or '32x32x8' in mn:
        return 8
    if '16x16x32' in mn or '16x16x16' in mn:
        return 4
    raise ValueError("unknown mfma " + mn)


class Ins:
    __slots__ = ('text', 'mn', 'ops', 'kind', 'wr', 'rd', 'srcc', 'srcab', 'ws', 'label', 'target',
                 'dpp', 'lds_dma', 'store_data', 'passes')

    def __init__(self, text):
        self.text = text
        t = text.split(';')[0].strip()
        self.label = None
        self.target = None
        self.wr, self.rd, self.srcc, self.srcab, self.store_data = [], [], [], [], []
        self.kind = 'other'
        self.ws = 1
        self.dpp = False
        self.lds_dma = False
        self.passes = 0
        if not t:
            self.kind = 'none'
            self.ws = 0
            self.mn = ''
            return
        if t.endswith(':'):
            self.kind = 'label'
            self.label = t[:-1]
            self.ws = 0
            self.mn = ''
            return
        if t.startswith('.'):
            self.kind = 'none'
            self.ws = 0
            self.mn = ''
            return
        parts = t.split(None, 1)
        mn = parts[0]
        self.mn = mn
        rest = parts[1] if len(parts) > 1 else ''
        ops, cur, depth = [], '', 0
        for ch in rest:
            if ch == '[':
                depth += 1
            if ch == ']':
                depth -= 1
            if ch == ',' and depth == 0:
                ops.append(cur.strip())
                cur = ''
            else:
                cur += ch
        if cur.strip():
            ops.append(cur.strip())
        mods = ''
        if ops:
            sp = ops[-1].split(None, 1)
            if len(sp) > 1:
                ops[-1] = sp[0]
                mods = sp[1]
        self.ops = ops
        R = regs_of
        if mn == 's_nop':
            self.kind = 'nop'
            self.ws = int(ops[0], 0) + 1
        elif mn.startswith('s_cbranch') or mn == 's_branch':
            self.kind = 'branch'
            self.target = ops[0]
        elif mn == 's_endpgm':
            self.kind = 'end'
        elif mn.startswith('v_mfma'):
            self.kind = 'mfma'
            self.passes = mfma_passes(mn)
            self.wr = R(ops[0])
            self.srcab = R(ops[1]) + R(ops[2])
            self.srcc = R(ops[3])
            self.rd = self.srcab + self.srcc
        elif mn.startswith('v_'):
            self.kind = 'trans' if mn.startswith(TRANS) else 'valu'
            self.dpp = 'dpp' in mn or 'quad_perm' in mods or 'row_' in mods
            if mn.startswith('v_cmp'):
                self.wr = R(ops[0])
                for o in ops[1:]:
                    self.rd += R(o)
                if mn.startswith('v_cmpx'):
                    self.wr += [('exec', 0)]
            elif mn.startswith(('v_add_co', 'v_sub_co', 'v_subrev_co', 'v_addc_co', 'v_subb_co')):
                self.wr = R(ops[0]) + R(ops[1])
                for o in ops[2:]:
                    self.rd += R(o)
            elif mn.startswith(('v_permlane32_swap', 'v_permlane16_swap')):
                self.wr = R(ops[0]) + R(ops[1])
                self.rd = R(ops[0]) + R(ops[1])
                self.kind = 'permlane'
            else:
                self.wr = R(ops[0])
                for o in ops[1:]:
                    self.rd += R(o)
                if mn.startswith(('v_fmac', 'v_dot2c', 'v_pk_fmac')) or 'UNUSED_PRESERVE' in mods:
                    self.rd += R(ops[0])
                if mn.startswith('v_cndmask') and len(ops) == 3:
                    self.rd += [('vcc', 0)]
                if mn.startswith(('v_readfirstlane', 'v_readlane')):
                    self.kind = 'readlane'
                if mn.startswith('v_writelane'):
                    self.rd += R(ops[0])
        elif mn.startswith('ds_'):
            self.kind = 'ds'
            if mn.startswith(('ds_read', 'ds_bpermute', 'ds_permute', 'ds_swizzle')):
                self.wr = R(ops[0])
                for o in ops[1:]:
                    self.rd += R(o)
            else:
                for o in ops:
                    self.rd += R(o)
        elif mn.startswith(('buffer_', 'global_')):
            self.kind = 'vmem'
            allm = ' ' + mods + ' '
            is_lds = (' lds ' in allm) or mn.startswith('global_load_lds')
            if mn in ('buffer_inv', 'buffer_wbl2'):
                pass
            elif is_lds:
                self.lds_dma = True
                for o in ops:
                    self.rd += R(o)
                self.rd += [('m0', 0)]
            elif '_load' in mn:
                self.wr = R(ops[0])
                for o in ops[1:]:
                    self.rd += R(o)
            elif '_store' in mn or '_atomic' in mn:
                for o in ops:
                    self.rd += R(o)
                if mn.startswith('buffer_'):
                    data = R(ops[0])
                else:
                    data = R(ops[1])
                if 'x4' in mn or 'x3' in mn:
                    self.store_data = data
        elif mn.startswith('s_'):
            self.kind = 'salu'
            if mn.startswith(('s_cmp', 's_waitcnt', 's_barrier', 's_setprio', 's_sleep', 's_bitcmp')):
                for o in ops:
                    self.rd += R(o)
            elif mn.startswith(('s_load', 's_memtime', 's_memrealtime', 's_buffer_load')):
                self.kind = 'smem'
                self.wr = R(ops[0])
                for o in ops[1:]:
                    self.rd += R(o)
            elif 'saveexec' in mn:
                self.wr = R(ops[0]) + [('exec', 0)]
                self.rd = R(ops[1])
            else:
                self.wr = R(ops[0]) if ops else []
                for o in ops[1:]:
                    self.rd += R(o)


def vnorm(r):
    return r


MF_SRCC_OVL = {2: 4, 4: 6, 8: 10, 16: 18}
MF_AB = {2: 5, 4: 8, 8: 12, 16: 20}
MF_WAR = {2: 1, 4: 3, 8: 7, 16: 15}


def required(p, c):
    need = 0
    isvec = lambda r: r[0] in ('v', 'a')
    pw = set(p.wr)
    if p.kind == 'mfma':
        D = pw
        if c.kind == 'mfma':
            if set(c.srcc) & D:
                if c.srcc == p.wr and c.passes == p.passes:
                    need = max(need, 0 if p.passes >= 4 else 2)
                else:
                    need = max(need, MF_SRCC_OVL[p.passes])
            if set(c.srcab) & D:
                need = max(need, MF_AB[p.passes])
            if (set(c.wr) & D) and not (set(c.srcc) & D):
                need = max(need, MF_SRCC_OVL[p.passes])
        elif c.kind in ('valu', 'trans', 'permlane', 'readlane', 'ds', 'vmem'):
            if (set(c.rd) | set(c.wr)) & D:
                need = max(need, MF_AB[p.passes])
        if c.kind in ('valu', 'trans', 'permlane') and set(c.wr) & set(p.srcc):
            need = max(need, MF_WAR[p.passes])
    if p.kind in ('valu', 'trans', 'permlane', 'readlane'):
        vw = {r for r in pw if isvec(r)}
        sw = {r for r in pw if r[0] in ('s', 'vcc')}
        if c.kind == 'mfma' and vw & set(c.rd):
            need = max(need, 2)
        if p.kind == 'trans' and c.kind in ('valu', 'permlane', 'readlane', 'mfma', 'ds', 'vmem') and vw & set(c.rd):
            need = max(need, 1)
        if c.kind == 'readlane' and vw & set(c.rd):
            need = max(need, 1)
        if c.kind == 'permlane' and vw & set(c.rd):
            need = max(need, 2)
        if c.dpp and vw & set(c.rd):
            need = max(need, 2)
        if sw:
            if c.kind == 'vmem' and sw & set(c.rd):
                need = max(need, 5)
            if c.kind in ('valu', 'trans', 'permlane', 'mfma') and sw & set(c.rd):
                need = max(need, 2)
            if c.kind == 'readlane' and sw & set(c.rd):
                need = max(need, 4)
            if c.kind in ('salu', 'branch', 'smem') and sw & set(c.rd):
                need = max(need, 3)
        if ('exec', 0) in pw:
            need = max(need, 5)
    if p.mn.startswith('v_dot'):
        if c.mn == p.mn:
            srcs = set()
            for o in c.ops[1:3]:
                srcs |= set(regs_of(o))
            if srcs & pw:
                need = max(need, 3)
        elif (set(c.rd) | set(c.wr)) & pw:
            need = max(need, 3)
    if p.kind == 'valu' and p.mn.startswith('v_cmp') and c.kind == 'branch' and 'vcc' in c.mn:
        need = max(need, 5)
    if p.kind == 'salu' and ('m0', 0) in pw and c.lds_dma:
        need = max(need, 1)
    if p.kind == 'salu' and ('exec', 0) in pw and c.kind == 'mfma':
        need = max(need, 4)
    if p.kind == 'vmem' and p.store_data:
        if set(c.wr) & set(p.store_data):
            need = max(need, 2)
    return need


def fix_hazards(lines, verbose=False, name=''):
    total_ins = 0
    for _ in range(10000):
        ins = [Ins(l) for l in lines]
        labels = {x.label: i for i, x in enumerate(ins) if x.label}
        viol = None
        for i, p in enumerate(ins):
            if p.kind not in ('mfma', 'valu', 'trans', 'permlane', 'readlane', 'salu', 'vmem'):
                continue
            if p.kind == 'salu' and not ({('m0', 0), ('exec', 0)} & set(p.wr)):
                continue
            if p.kind == 'vmem' and not p.store_data:
                continue
            stack = [(i + 1, 0)]
            seen = set()
            while stack and viol is None:
                j, d = stack.pop()
                while j < len(ins) and d < 21:
                    if (j, d) in seen:
                        break
                    seen.add((j, d))
                    c = ins[j]
                    if c.kind in ('none', 'label'):
                        j += 1
                        continue
                    need = required(p, c)
                    if need > d:
                        viol = (j, need - d, i)
                        break
                    if c.kind == 'end':
                        break
                    if c.kind == 'branch':
                        if c.target in labels:
                            stack.append((labels[c.target], d + 1))
                        if c.mn == 's_branch':
                            break
                    d += c.ws
                    j += 1
            if viol:
                break
        if not viol:
            break
        j, n, i = viol
        if verbose:
            print(f"[{name}] hazard: '{ins[i].text.strip()}' -> '{ins[j].text.strip()}' need +{n}")
        new = []
        while n > 0:
            k = min(n, 16)
            new.append(f"  s_nop {k - 1}")
            n -= k
        total_ins += 1
        lines = lines[:j] + new + lines[j:]
    return lines, total_ins


class Kern:
    def __init__(self, name, nvgpr, nsgpr=96, accum=None, nagpr=0):
        self.name = name
        self.lines = []
        self.nvgpr = nvgpr
        self.nsgpr = nsgpr
        self.nagpr = nagpr
        self.uid = 0

    def __call__(self, s):
        for l in s.split('\n'):
            l = l.strip()
            if l:
                self.lines.append(l if l.endswith(':') else '  ' + l)

    STAMPS = False
    def stamp(self, i):
        if not Kern.STAMPS:
            return
        self("s_waitcnt lgkmcnt(0)")
        self(f"s_memtime s[{64+2*i}:{65+2*i}]")
        if i == 0:
            self("s_memrealtime s[80:81]")
        self("s_waitcnt lgkmcnt(0)")
        self.nst = max(getattr(self, 'nst', 0), i + 1)

    def stamp_end(self, ws_srd, base_off, wave_sgpr, kidx):
        if not Kern.STAMPS:
            return
        self("s_mov_b64 exec, -1")
        self("s_waitcnt vmcnt(0) lgkmcnt(0)")
        self("s_memtime s[78:79]")
        self("s_memrealtime s[82:83]")
        self("s_waitcnt lgkmcnt(0)")
        self(f"s_lshl_b32 s84, s2, 3")
        self(f"s_add_u32 s84, s84, s{wave_sgpr}")
        self(f"s_lshl_b32 s84, s84, 6")
        self(f"s_add_u32 s84, s84, {base_off + kidx * 256 * 8 * 64}")
        self("v_mov_b32 v0, 0")
        for i in range(8):
            self(f"v_mov_b32 v1, s{64+2*i}")
            self(f"buffer_store_dword v1, v0, s[{ws_srd}:{ws_srd+3}], s84 offen offset:{4*i}")
            self("s_nop 1")
        for j, r in enumerate((80, 82)):
            self(f"v_mov_b32 v1, s{r}")
            self(f"buffer_store_dword v1, v0, s[{ws_srd}:{ws_srd+3}], s84 offen offset:{32+4*j}")
            self("s_nop 1")

    def label(self, base):
        self.uid += 1
        return f"L_{self.name}_{base}_{self.uid}"

    def text(self, verbose=False):
        lines, n = fix_hazards(self.lines, verbose, self.name)
        if n:
            print(f"[{self.name}] inserted {n} nop groups")
        nv = (self.nvgpr + 3) // 4 * 4
        out = [f".globl {self.name}", ".p2align 8", f".type {self.name},@function", f"{self.name}:"]
        out += lines
        body = "\n".join(out)
        desc = f""".amdhsa_kernel {self.name}
  .amdhsa_next_free_vgpr {nv + self.nagpr}
  .amdhsa_next_free_sgpr {self.nsgpr}
  .amdhsa_accum_offset {nv}
  .amdhsa_group_segment_fixed_size 0
  .amdhsa_kernarg_size 80
  .amdhsa_user_sgpr_count 2
  .amdhsa_user_sgpr_kernarg_segment_ptr 1
  .amdhsa_system_sgpr_workgroup_id_x 1
.end_amdhsa_kernel"""
        return body, desc


def build_file(header_lines, kernels, launches, verbose=False):
    out = list(header_lines)
    for (k, grid, block, lds) in launches:
        out.append(f"; @launch kernel={k} grid=({grid},1,1) block=({block},1,1) lds={lds}")
    out.append('.amdgcn_target "amdgcn-amd-amdhsa--gfx950"')
    out.append('.text')
    descs = []
    for k in kernels:
        b, d = k.text(verbose)
        out.append(b)
        descs.append(d)
    out.append('.section .rodata,"a"')
    for d in descs:
        out.append('.p2align 6')
        out.append(d)
    return "\n".join(out) + "\n"
```

```python
import sys, os
sys.path.insert(0, os.path.dirname(os.path.abspath(__file__)))
from asmlib import Kern, build_file

def _al(x, a=4096):
    return (x + a - 1) // a * a

S, D, H, DH, F = 2048, 640, 32, 20, 1728
KS_D, KS_F = D // 32, F // 32
QT = 1536
KVT = 2880
WS = {}
_off = 0
for _n, _sz in (("WQKVF", 120 * KS_D * 1024), ("WOF", 40 * KS_D * 1024), ("WGF", 108 * KS_D * 1024),
                ("WUF", 108 * KS_D * 1024), ("WDF", 40 * KS_F * 1024), ("CSP", KS_D * 2 * F * 4),
                ("QF", H * 64 * QT), ("KV", H * 64 * KVT + 8192), ("OF", 128 * KS_D * 1024),
                ("HF", 128 * KS_D * 1024), ("STATS", S * 8 * 8), ("ACT", 128 * KS_F * 1024), ("STAMP", 8 * 256 * 8 * 64)):
    WS[_n] = _off
    _off = _al(_off + _sz)
WS_TOTAL = _off

ARG = dict(x=0, wqkv=8, wo=16, bx=24, wg=32, wu=40, wd=48, out=56, dbg=64, ws=72)
QSCALE = 0x3EA52B2C
import struct, math
def f32bits(x):
    return struct.unpack("<I", struct.pack("<f", x))[0]
QSCALE = f32bits(DH ** -0.5 * math.log2(math.e))
ONES_BF16 = 0x3F803F80
PREFETCH = int(os.environ.get('PREFETCH', '1'))
PF_GRAN = int(os.environ.get('PF_GRAN', '128'))


def srd(k, s, argoff, nbytes, tmp=None):
    k(f"s_load_dwordx2 s[{s}:{s+1}], s[0:1], {argoff}")
    return f"""s_and_b32 s{s+1}, s{s+1}, 0xffff
s_mov_b32 s{s+2}, {nbytes}
s_mov_b32 s{s+3}, 0x00020000"""


def loader_schedule(k, name, NS, RING, n, issue, first=2, ramp=2, early=0):
    issued = min(first, NS)
    for st in range(issued):
        issue(st)
    for s in range(NS):
        w = issued - s - 1
        k(f"s_waitcnt vmcnt({min(63, n*w)})\ns_barrier")
        lim = min(NS, s + RING - early)
        ni = max(0, min(ramp, lim - issued))
        for _ in range(ni):
            issue(issued)
            issued += 1


def gen_prep():
    k = Kern("prep_kernel", 64)
    segs = [("wo", 640, 20, 8, 5, "WOF"), ("wd", 640, 54, 8, 5, "WDF"),
            ("wg", 1728, 20, 36, 3, "WGF"), ("wu", 1728, 20, 36, 3, "WUF")]
    total = sum(ks * nc for _, _, ks, nc, _, _ in segs)
    nwg = (total + 3) // 4
    k(f"""
s_cmp_ge_u32 s2, {nwg}
s_cbranch_scc1 L_prep_end
v_lshrrev_b32 v1, 6, v0
v_and_b32 v2, 63, v0
s_nop 0
v_readfirstlane_b32 s3, v1
s_lshl_b32 s20, s2, 2
s_add_u32 s20, s20, s3
s_mul_i32 s21, s3, 5120
s_cmp_ge_u32 s20, {total}
s_cbranch_scc1 L_prep_end
s_load_dwordx2 s[12:13], s[0:1], {ARG['ws']}
""")
    start = 0
    for i, (arg, N, KS, nch, nb, dst) in enumerate(segs):
        cnt = KS * nch
        k(f"""
s_cmp_lt_u32 s20, {start + cnt}
s_cbranch_scc0 L_prep_seg{i+1}
s_load_dwordx2 s[8:9], s[0:1], {ARG[arg]}
s_sub_u32 s20, s20, {start}
s_mov_b32 s10, {KS * 32 * N * 2}
s_mov_b32 s22, {N * 2}
s_mov_b32 s23, {KS}
s_mov_b32 s24, {nch}
s_mov_b32 s25, {WS[dst]}
s_mov_b32 s26, {(1 << 32) // nch + 1}
s_mov_b32 s27, {1 if arg == 'wu' else 0}
s_branch L_prep_nb{nb}
L_prep_seg{i+1}:""")
        start += cnt
    k("s_endpgm")
    for nb in (5, 3):
        Srow = nb * 32
        cpr = nb * 2
        mul, sh = (205, 11) if nb == 5 else (171, 10)
        k(f"""
L_prep_nb{nb}:
s_mul_hi_u32 s28, s20, s26
s_mul_i32 s29, s28, s24
s_sub_u32 s29, s20, s29           ; chunk
s_waitcnt lgkmcnt(0)
s_and_b32 s9, s9, 0xffff
s_mov_b32 s11, 0x00020000
s_and_b32 s13, s13, 0xffff
s_mov_b32 s14, {WS_TOTAL}
s_mov_b32 s15, 0x00020000
s_lshl_b32 s30, s28, 5
s_mul_i32 s30, s30, s22           ; ks*32*stride
s_mul_i32 s31, s29, {Srow}
s_add_u32 s30, s30, s31
""")
        for i in range(nb):
            k(f"""
v_add_u32 v3, {i*64}, v2
v_mul_u32_u24 v4, {mul}, v3
v_lshrrev_b32 v4, {sh}, v4        ; row
v_mul_u32_u24 v5, {cpr}, v4
v_sub_u32 v5, v3, v5              ; cc
v_mul_lo_u32 v4, v4, s22
v_lshl_add_u32 v4, v5, 4, v4
s_add_u32 m0, s21, {i*1024}
s_nop 0
buffer_load_dwordx4 v4, s[8:11], s30 offen lds
""")
        k(f"""
v_lshrrev_b32 v6, 4, v2           ; g
v_bfe_u32 v7, v2, 2, 2            ; r
v_lshl_add_u32 v6, v6, 2, v7
v_mul_u32_u24 v6, {Srow}, v6
v_and_b32 v7, 3, v2
v_lshl_add_u32 v6, v7, 3, v6
v_add_u32 v6, s21, v6
v_lshlrev_b32 v8, 4, v2           ; lane*16
s_mul_i32 s31, s29, {nb}          ; first col block
s_mul_i32 s31, s31, s23
s_add_u32 s31, s31, s28
s_lshl_b32 s31, s31, 10
s_add_u32 s31, s31, s25           ; dst offset of first block
s_lshl_b32 s32, s23, 10
s_waitcnt vmcnt(0)
""")
        for b in range(nb):
            k(f"""
ds_read_b64_tr_b16 v[{16+4*b}:{17+4*b}], v6 offset:{b*32}
ds_read_b64_tr_b16 v[{18+4*b}:{19+4*b}], v6 offset:{16*Srow + b*32}
""")
        k("s_waitcnt lgkmcnt(0)")
        for b in range(nb):
            k(f"""
buffer_store_dwordx4 v[{16+4*b}:{19+4*b}], v8, s[12:15], s31 offen
s_add_u32 s31, s31, s32
""")
        if nb == 3:
            k(f"""
v_mov_b32 v40, {ONES_BF16}
v_mov_b32 v41, {ONES_BF16}
v_mov_b32 v42, {ONES_BF16}
v_mov_b32 v43, {ONES_BF16}
s_lshl_b32 s33, s28, 1
s_add_u32 s33, s33, s27
s_mul_i32 s33, s33, 1728
s_mul_i32 s34, s29, 48
s_add_u32 s33, s33, s34
s_lshl_b32 s33, s33, 2
s_add_u32 s33, s33, {WS['CSP']}
v_lshrrev_b32 v9, 4, v2
v_lshlrev_b32 v9, 4, v9           ; g*16 bytes
v_and_b32 v10, 15, v2
v_cmp_eq_u32 vcc, 0, v10
""")
            for b in range(3):
                k(f"v_mfma_f32_16x16x32_bf16 v[{44+4*b}:{47+4*b}], v[{16+4*b}:{19+4*b}], v[40:43], 0")
            k("s_and_saveexec_b64 s[36:37], vcc")
            for b in range(3):
                k(f"buffer_store_dwordx4 v[{44+4*b}:{47+4*b}], v9, s[12:15], s33 offen offset:{b*64}")
        k("s_endpgm")
    k("L_prep_end:\ns_endpgm")
    return k, nwg, 256, 4 * 5120


def prep_job_part1(k, sjob, slds, tag):
    segs = [("wo", 44, 640, 20, 8, 5, "WOF"), ("wd", 46, 640, 54, 8, 5, "WDF"), ("wg", 48, 1728, 20, 36, 3, "WGF"), ("wu", 50, 1728, 20, 36, 3, "WUF")]
    total = sum(ks * nc for _, _, _, ks, nc, _, _ in segs)
    k(f"s_mov_b32 s63, 0\ns_cmp_ge_u32 s{sjob}, {total}\ns_cbranch_scc1 L_{tag}_p1done")
    start = 0
    for i, (arg, sp, N, KS, nch, nb, dst) in enumerate(segs):
        cnt = KS * nch
        if i < len(segs) - 1:
            k(f"s_cmp_lt_u32 s{sjob}, {start + cnt}\ns_cbranch_scc0 L_{tag}_seg{i+1}")
        k(f"""s_mov_b32 s8, s{sp}
s_and_b32 s9, s{sp+1}, 0xffff
s_sub_u32 s52, s{sjob}, {start}
s_mov_b32 s10, {KS * 32 * N * 2}
s_mov_b32 s53, {N * 2}
s_mov_b32 s54, {KS}
s_mov_b32 s55, {nch}
s_mov_b32 s56, {WS[dst]}
s_mov_b32 s57, {(1 << 32) // nch + 1}
s_mov_b32 s58, {1 if arg == 'wu' else 0}
s_branch L_{tag}_nb{nb}
L_{tag}_seg{i+1}:""")
        start += cnt
    for nb in (5, 3):
        Srow = nb * 32
        cpr = nb * 2
        mul, sh = (205, 11) if nb == 5 else (171, 10)
        k(f"""
L_{tag}_nb{nb}:
s_mov_b32 s11, 0x00020000
s_mov_b32 s63, {nb}
s_mul_hi_u32 s59, s52, s57        ; ks
s_mul_i32 s60, s59, s55
s_sub_u32 s60, s52, s60           ; chunk
s_lshl_b32 s61, s59, 5
s_mul_i32 s61, s61, s53
s_mul_i32 s62, s60, {Srow}
s_add_u32 s61, s61, s62
""")
        for i in range(nb):
            k(f"""v_add_u32 v160, {i*64}, v2
v_mul_u32_u24 v161, {mul}, v160
v_lshrrev_b32 v161, {sh}, v161
v_mul_u32_u24 v162, {cpr}, v161
v_sub_u32 v162, v160, v162
v_mul_lo_u32 v161, v161, s53
v_lshl_add_u32 v161, v162, 4, v161
s_add_u32 m0, s{slds}, {i*1024}
s_nop 0
buffer_load_dwordx4 v161, s[8:11], s61 offen lds""")
        k(f"s_branch L_{tag}_p1done" if nb == 5 else "")
    k(f"L_{tag}_p1done:")


def prep_job_part2(k, slds, tag, later):
    k(f"s_cmp_eq_u32 s63, 0\ns_cbranch_scc1 L_{tag}_p2done\ns_waitcnt vmcnt({later})\ns_cmp_eq_u32 s63, 3\ns_cbranch_scc1 L_{tag}_q3")
    for nb in (5, 3):
        Srow = nb * 32
        if nb == 3:
            k(f"L_{tag}_q3:")
        k(f"""
v_lshrrev_b32 v160, 4, v2
v_bfe_u32 v161, v2, 2, 2
v_lshl_add_u32 v160, v160, 2, v161
v_mul_u32_u24 v160, {Srow}, v160
v_and_b32 v161, 3, v2
v_lshl_add_u32 v160, v161, 3, v160
v_add_u32 v160, s{slds}, v160
s_mul_i32 s61, s60, {nb}
s_mul_i32 s61, s61, s54
s_add_u32 s61, s61, s59
s_lshl_b32 s61, s61, 10
s_add_u32 s61, s61, s56
s_lshl_b32 s62, s54, 10
""")
        for b in range(nb):
            k(f"""ds_read_b64_tr_b16 v[{164+4*b}:{165+4*b}], v160 offset:{b*32}
ds_read_b64_tr_b16 v[{166+4*b}:{167+4*b}], v160 offset:{16*Srow + b*32}""")
        k("s_waitcnt lgkmcnt(0)")
        for b in range(nb):
            k(f"buffer_store_dwordx4 v[{164+4*b}:{167+4*b}], v3, s[12:15], s61 offen\ns_add_u32 s61, s61, s62")
        if nb == 3:
            k(f"""
v_mov_b32 v184, {ONES_BF16}
v_mov_b32 v185, {ONES_BF16}
v_mov_b32 v186, {ONES_BF16}
v_mov_b32 v187, {ONES_BF16}
s_lshl_b32 s61, s59, 1
s_add_u32 s61, s61, s58
s_mul_i32 s61, s61, 1728
s_mul_i32 s62, s60, 48
s_add_u32 s61, s61, s62
s_lshl_b32 s61, s61, 2
s_add_u32 s61, s61, {WS['CSP']}
v_lshrrev_b32 v161, 4, v2
v_lshlrev_b32 v161, 4, v161
v_and_b32 v162, 15, v2
v_cmp_eq_u32 vcc, 0, v162
""")
            for b in range(3):
                k(f"v_mfma_f32_16x16x32_bf16 v[{188+4*b}:{191+4*b}], v[{164+4*b}:{167+4*b}], v[184:187], 0")
            k("s_nop 7\ns_and_saveexec_b64 s[52:53], vcc")
            for b in range(3):
                k(f"buffer_store_dwordx4 v[{188+4*b}:{191+4*b}], v161, s[12:15], s61 offen offset:{b*64}")
            k("s_mov_b64 exec, s[52:53]")
        else:
            k(f"s_branch L_{tag}_p2done")
    k(f"L_{tag}_p2done:")


def gen_qkv():
    k = Kern("qkv_kernel", 200)
    SLOT = 32768
    RING = 4
    NS = 10
    LDS = RING * SLOT
    ACC = 8
    CSA = 72
    ONE = 88
    STA = 92
    FS = 96
    T = 160
    SUMA = 176
    GRAM = 184
    k(f"""
s_and_b32 s20, s2, 7              ; xcd
s_lshr_b32 s21, s2, 3
s_and_b32 s16, s20, 1
s_lshl_b32 s16, s16, 3
s_lshr_b32 s17, s21, 2
s_add_u32 s16, s16, s17
s_cmp_ge_u32 s2, 256
s_cbranch_scc1 L_qkv_end
s_cmp_ge_u32 s16, 15
s_cbranch_scc1 L_qkv_end
s_load_dwordx2 s[4:5], s[0:1], {ARG['x']}
s_load_dwordx2 s[8:9], s[0:1], {ARG['wqkv']}
s_load_dwordx2 s[12:13], s[0:1], {ARG['ws']}
v_lshrrev_b32 v1, 6, v0
v_and_b32 v2, 63, v0              ; lane
s_lshr_b32 s17, s20, 1
v_readfirstlane_b32 s3, v1        ; wave
s_lshl_b32 s17, s17, 2
s_and_b32 s22, s21, 3
s_add_u32 s17, s17, s22
v_lshlrev_b32 v3, 4, v2           ; lane*16
v_and_b32 v4, 15, v2              ; l&15
v_lshrrev_b32 v5, 4, v2           ; g
s_waitcnt lgkmcnt(0)
s_and_b32 s5, s5, 0xffff
s_mov_b32 s6, {S*D*2}
s_mov_b32 s7, 0x00020000
s_and_b32 s9, s9, 0xffff
s_mov_b32 s10, {D*3*D*2}
s_mov_b32 s11, 0x00020000
s_and_b32 s13, s13, 0xffff
s_mov_b32 s14, {WS_TOTAL}
s_mov_b32 s15, 0x00020000
s_cmp_ge_u32 s3, 4
s_cbranch_scc1 L_qkv_loader
""")
    k.stamp(0)
    k(f"""
s_and_b32 s18, s3, 1              ; wr
s_lshr_b32 s19, s3, 1             ; wc
v_and_b32 v6, 7, v4
v_xor_b32 v7, v5, v6              ; (g ^ r7)          (ksl=0)
v_xor_b32 v6, 4, v7               ; ((4+g) ^ r7)      (ksl=1)
v_lshlrev_b32 v7, 4, v7
v_lshlrev_b32 v6, 4, v6
v_lshl_add_u32 v7, v4, 7, v7      ; tok*128 + ..
v_lshl_add_u32 v6, v4, 7, v6
s_lshl_b32 s24, s18, 13           ; 64wr*128
s_lshl_b32 s25, s19, 12           ; 2wc*16*128
s_add_u32 s26, s24, s25
s_xor_b32 s25, s25, 4096
s_add_u32 s27, s24, s25
v_add_u32 v{T}, s26, v7           ; j=0,1 ksl=0
v_add_u32 v{T+1}, s26, v6         ; j=0,1 ksl=1
v_add_u32 v{T+2}, s27, v7         ; j=2,3 ksl=0
v_add_u32 v{T+3}, s27, v6         ; j=2,3 ksl=1
v_bfe_u32 v6, v2, 2, 2            ; r
v_lshl_add_u32 v6, v5, 2, v6      ; rho
v_and_b32 v7, 7, v6
v_and_b32 v8, 3, v2
v_lshlrev_b32 v8, 3, v8
v_lshl_add_u32 v8, v6, 8, v8      ; rho*256 + c4*8
v_add_u32 v8, 16384, v8
s_lshl_b32 s24, s19, 2
""")
    for i in range(4):
        k(f"s_add_u32 s25, s24, {i}\nv_xor_b32 v9, s25, v7\nv_lshl_add_u32 v{T+4+i}, v9, 5, v8")
    k("s_mov_b32 s23, 0")
    for r in list(range(ACC, ACC + 80)) + list(range(SUMA, SUMA + 16)) + list(range(FS + 32, FS + 64)):
        k(f"v_mov_b32 v{r}, 0")
    for r in range(ONE, ONE + 4):
        k(f"v_mov_b32 v{r}, {ONES_BF16}")
    for i in range(8):
        k(f"v_mov_b32 v{T+8+i}, v{T+i}")
    k("s_cmp_ge_u32 s16, 10\ns_cbranch_scc1 L_qkv_vA")
    AD = T + 8

    def reads(st, ksl, so):
        b = FS + st * 32
        r = []
        for j in range(4):
            r.append(f"ds_read_b128 v[{b+4*j}:{b+4*j+3}], v{AD + (j >> 1)*2 + ksl} offset:{so + (j & 1)*2048}")
        for i in range(4):
            r.append(f"ds_read_b64_tr_b16 v[{b+16+4*i}:{b+17+4*i}], v{AD+4+i} offset:{so + ksl*8192}")
            r.append(f"ds_read_b64_tr_b16 v[{b+18+4*i}:{b+19+4*i}], v{AD+4+i} offset:{so + ksl*8192 + 4096}")
        return r

    def mfmas(st, o, fillers):
        b = FS + st * 32
        f = list(fillers)
        seq = []
        on = f"v[{ONE}:{ONE+3}]"
        for i in range(4):
            w = f"v[{b+16+4*i}:{b+19+4*i}]"
            for j in range(4):
                a = f"v[{b+4*j}:{b+4*j+3}]"
                c = ACC + (i * 4 + j) * 4
                x, y = (w, a) if o == 'B' else (a, w)
                seq.append(f"v_mfma_f32_16x16x32_bf16 v[{c}:{c+3}], {x}, {y}, v[{c}:{c+3}]")
            c = CSA + 4 * i
            x, y = (w, on) if o == 'B' else (on, w)
            seq.append(f"v_mfma_f32_16x16x32_bf16 v[{c}:{c+3}], {x}, {y}, v[{c}:{c+3}]")
            if i < 2:
                a = f"v[{b+4*i}:{b+4*i+3}]"
                seq.append(f"v_mfma_f32_16x16x32_bf16 v[{SUMA+4*i}:{SUMA+4*i+3}], {on}, {a}, v[{SUMA+4*i}:{SUMA+4*i+3}]")
                seq.append(f"v_mfma_f32_16x16x32_bf16 v[{GRAM+4*i}:{GRAM+4*i+3}], {a}, {a}, v[{GRAM+4*i}:{GRAM+4*i+3}]")
        out = []
        for m in seq:
            out.append(m)
            if f:
                out.append(f.pop(0))
        return out + f

    def variant(o):
        k(f"s_mov_b32 s26, 0\nL_qkv_loop{o}:")
        for half in range(2):
            so = half * SLOT
            k("s_barrier")
            r0 = reads(0, 0, so)
            k("\n".join(r0[:4]))
            k("\n".join(mfmas(1, o, r0[4:])))
            r1 = reads(1, 1, so)
            k("s_waitcnt lgkmcnt(0)")
            k("\n".join(mfmas(0, o, r1)))
            k("s_waitcnt lgkmcnt(0)")
        for i in range(8):
            k(f"v_xor_b32 v{AD+i}, {2*SLOT}, v{AD+i}")
        k(f"s_add_u32 s26, s26, 1\ns_cmp_lt_u32 s26, {NS//2}\ns_cbranch_scc1 L_qkv_loop{o}")
        k("\n".join(mfmas(1, o, [])))
        epilogue(o)

    def epilogue(o):
        k.stamp(1)
        E = T
        k(f"""s_nop 7
v_and_b32 v{E+2}, 3, v4
v_lshrrev_b32 v{E+3}, 2, v4
v_cmp_eq_u32 s[28:29], v{E+3}, v5         ; g == tok>>2
""")
        for jj in range(2):
            a, q = STA + 2 * jj, STA + 2 * jj + 1
            gr = GRAM + 4 * jj
            k(f"""
v_cmp_eq_u32 vcc, 1, v{E+2}
v_cndmask_b32 v{q}, v{gr}, v{gr+1}, vcc
v_cmp_eq_u32 vcc, 2, v{E+2}
v_cndmask_b32 v{q}, v{q}, v{gr+2}, vcc
v_cmp_eq_u32 vcc, 3, v{E+2}
v_cndmask_b32 v{q}, v{q}, v{gr+3}, vcc
v_cndmask_b32 v{q}, 0, v{q}, s[28:29]
ds_swizzle_b32 v{E+1}, v{q} offset:0x401F
s_waitcnt lgkmcnt(0)
v_add_f32 v{q}, v{q}, v{E+1}
v_mov_b32 v{E+1}, v{q}
s_nop 1
v_permlane32_swap_b32 v{E+1}, v{q}
s_nop 1
v_add_f32 v{q}, v{q}, v{E+1}
v_mul_f32 v{a}, {f32bits(1.0/640)}, v{SUMA+4*jj}
v_mul_f32 v{q}, {f32bits(1.0/640)}, v{q}
v_fma_f32 v{q}, -v{a}, v{a}, v{q}
v_max_f32 v{q}, 0, v{q}
v_add_f32 v{q}, {f32bits(1e-5)}, v{q}
v_rsq_f32 v{q}, v{q}
s_nop 0
v_mul_f32 v{a}, v{a}, v{q}
""")
        k(f"""
s_barrier
s_lshl_b32 s24, s18, 8            ; 64wr*4
s_lshl_b32 s25, s19, 7            ; 32wc*4
s_add_u32 s24, s24, s25
v_lshlrev_b32 v{E}, 2, v4
v_add_u32 v{E}, s24, v{E}
ds_write_b32 v{E}, v{STA+1}                 ; rstd[128]
ds_write_b32 v{E}, v{STA} offset:512        ; mean*rstd[128]
ds_write_b32 v{E}, v{STA+3} offset:64
ds_write_b32 v{E}, v{STA+2} offset:576
s_waitcnt lgkmcnt(0)
s_barrier
s_lshl_b32 s35, s17, 2
s_lshl_b32 s24, s18, 1
s_add_u32 s35, s35, s24
s_add_u32 s30, s35, s19
s_xor_b32 s24, s19, 1
s_add_u32 s31, s35, s24
s_lshl_b32 s24, s18, 8
s_lshl_b32 s25, s19, 7
s_add_u32 s32, s24, s25           ; j=0 (j=1: +64)
s_xor_b32 s25, s25, 128
s_add_u32 s33, s24, s25           ; j=2 (j=3: +64)
""")
        R = FS
        if o == 'B':
            k(f"v_lshlrev_b32 v{E}, 2, v4\nv_add_u32 v{E+1}, s33, v{E}\nv_add_u32 v{E}, s32, v{E}")
            for j in range(4):
                k(f"ds_read_b32 v{R+j}, v{E + (j >> 1)} offset:{(j & 1)*64}\nds_read_b32 v{R+4+j}, v{E + (j >> 1)} offset:{512+(j & 1)*64}")
            k(f"""
s_mov_b32 s36, 1.0
s_mov_b32 s37, {KVT}
s_mov_b32 s38, {WS['KV']}
s_sub_u32 s39, s16, 5
s_cmp_lt_u32 s16, 5
s_cselect_b32 s36, {QSCALE}, s36
s_cselect_b32 s37, {QT}, s37
s_cselect_b32 s38, {WS['QF']}, s38
s_cselect_b32 s39, s16, s39
s_lshl_b32 s40, s37, 6
s_mul_i32 s41, s30, s37
s_add_u32 s41, s41, s38
s_mul_i32 s42, s31, s37
s_add_u32 s42, s42, s38
s_lshl_b32 s39, s39, 5
s_lshl_b32 s24, s19, 4
s_add_u32 s39, s39, s24           ; + wc*16
s_waitcnt lgkmcnt(0)
""")
            for j in range(4):
                k(f"v_mul_f32 v{R+j}, s36, v{R+j}\nv_mul_f32 v{R+4+j}, s36, v{R+4+j}")
            for i in range(4):
                cs = CSA + 4 * i
                k(f"""
s_add_u32 s24, s39, {4*i}
v_add_u32 v{E}, s24, v5             ; col4
v_mul_u32_u24 v{E+1}, 205, v{E}
v_lshrrev_b32 v{E+1}, 10, v{E+1}    ; head
v_mul_u32_u24 v{E+2}, 5, v{E+1}
v_sub_u32 v{E+2}, v{E}, v{E+2}      ; c
v_lshrrev_b32 v{E+3}, 1, v{E+2}
v_lshlrev_b32 v{E+3}, 9, v{E+3}
v_and_b32 v{E+4}, 1, v{E+2}
v_lshl_add_u32 v{E+3}, v{E+4}, 3, v{E+3}
v_cmp_eq_u32 vcc, 4, v{E+2}
v_mov_b32 v{E+4}, 4
v_mov_b32 v{E+5}, 3
v_cndmask_b32 v{E+4}, v{E+4}, v{E+5}, vcc
v_mul_lo_u32 v{E+1}, v{E+1}, s40
v_add_u32 v{E+3}, v{E+3}, v{E+1}
v_lshlrev_b32 v{E+5}, v{E+4}, v4
v_add_u32 v{E+5}, v{E+5}, v{E+3}    ; j even
v_lshlrev_b32 v{E+6}, v{E+4}, 16
v_add_u32 v{E+6}, v{E+6}, v{E+5}    ; j odd
""")
                for j in range(4):
                    c = ACC + (i * 4 + j) * 4
                    for q in range(4):
                        k(f"v_mul_f32 v{E+8}, v{R+4+j}, v{cs+q}\nv_fma_f32 v{c+q}, v{c+q}, v{R+j}, -v{E+8}")
                    k(f"""v_cvt_pk_bf16_f32 v{c}, v{c}, v{c+1}
v_cvt_pk_bf16_f32 v{c+1}, v{c+2}, v{c+3}
buffer_store_dwordx2 v[{c}:{c+1}], v{E+5+(j & 1)}, s[12:15], s{41 + (j >> 1)} offen""")
            k(f"""
s_cmp_ge_u32 s16, 8
s_cbranch_scc1 L_qkv_noconst
s_lshl_b32 s24, s16, 2
s_mul_i32 s24, s24, {64*KVT}
s_lshl_b32 s25, s17, 2
s_add_u32 s25, s25, s3
s_mul_i32 s25, s25, {KVT}
s_add_u32 s24, s24, s25
s_add_u32 s24, s24, {WS['KV']}
s_mov_b32 s40, {64*KVT}
v_and_b32 v{E}, 31, v2
v_lshrrev_b32 v{E+1}, 5, v2
v_mul_lo_u32 v{E+1}, v{E+1}, s40
v_lshl_add_u32 v{E+1}, v{E}, 3, v{E+1}
v_add_u32 v{E+1}, 1280, v{E+1}
v_add_u32 v{E+2}, {2*64*KVT}, v{E+1}
v_mov_b32 v{E+4}, {ONES_BF16}
v_mov_b32 v{E+5}, 0
buffer_store_dwordx2 v[{E+4}:{E+5}], v{E+1}, s[12:15], s24 offen
buffer_store_dwordx2 v[{E+4}:{E+5}], v{E+2}, s[12:15], s24 offen
v_and_b32 v{E}, 3, v2
v_bfe_u32 v{E+1}, v2, 2, 2
v_mul_lo_u32 v{E+1}, v{E+1}, s40
v_lshrrev_b32 v{E+2}, 1, v{E}
v_mul_u32_u24 v{E+2}, 672, v{E+2}
v_and_b32 v{E+3}, 1, v{E}
v_mul_u32_u24 v{E+3}, {21*16}, v{E+3}
v_add3_u32 v{E+1}, v{E+1}, v{E+2}, v{E+3}
v_add_u32 v{E+1}, {1536 + 20*16}, v{E+1}
buffer_store_dwordx4 v[{ONE}:{ONE+3}], v{E+1}, s[12:15], s24 offen
L_qkv_noconst:
""")
        else:
            k(f"v_lshlrev_b32 v{E}, 4, v5\nv_add_u32 v{E+1}, s33, v{E}\nv_add_u32 v{E}, s32, v{E}")
            for j in range(4):
                k(f"ds_read_b128 v[{R+8*j}:{R+8*j+3}], v{E + (j >> 1)} offset:{(j & 1)*64}\nds_read_b128 v[{R+8*j+4}:{R+8*j+7}], v{E + (j >> 1)} offset:{512+(j & 1)*64}")
            k(f"""
s_mul_i32 s41, s30, {KVT}
s_add_u32 s41, s41, {WS['KV']}
s_mul_i32 s42, s31, {KVT}
s_add_u32 s42, s42, {WS['KV']}
s_sub_u32 s39, s16, 10
s_lshl_b32 s39, s39, 7            ; tile*128
s_lshl_b32 s24, s19, 6
s_add_u32 s39, s39, s24           ; + wc*64
s_mov_b32 s40, {64*KVT}
s_waitcnt lgkmcnt(0)
""")
            for i in range(4):
                cs = CSA + 4 * i
                k(f"""
s_add_u32 s24, s39, {16*i}
v_add_u32 v{E}, s24, v4             ; n (0..639)
v_mul_u32_u24 v{E+1}, 3277, v{E}
v_lshrrev_b32 v{E+1}, 16, v{E+1}    ; head = n/20
v_mul_u32_u24 v{E+2}, 20, v{E+1}
v_sub_u32 v{E+2}, v{E}, v{E+2}      ; d
v_and_b32 v{E+3}, 1, v5
v_mul_u32_u24 v{E+3}, 21, v{E+3}
v_add_u32 v{E+3}, v{E+3}, v{E+2}
v_lshlrev_b32 v{E+3}, 4, v{E+3}
v_lshrrev_b32 v{E+4}, 1, v5
v_lshl_add_u32 v{E+3}, v{E+4}, 3, v{E+3}
v_mul_lo_u32 v{E+1}, v{E+1}, s40
v_add_u32 v{E+5}, v{E+3}, v{E+1}
v_add_u32 v{E+5}, 1536, v{E+5}
v_add_u32 v{E+6}, 672, v{E+5}
""")
                for j in range(4):
                    c = ACC + (i * 4 + j) * 4
                    for q in range(4):
                        k(f"v_mul_f32 v{E+8}, v{R+8*j+4+q}, v{cs}\nv_fma_f32 v{c+q}, v{c+q}, v{R+8*j+q}, -v{E+8}")
                    k(f"""v_cvt_pk_bf16_f32 v{c}, v{c}, v{c+1}
v_cvt_pk_bf16_f32 v{c+1}, v{c+2}, v{c+3}
buffer_store_dwordx2 v[{c}:{c+1}], v{E+5+(j & 1)}, s[12:15], s{41 + (j >> 1)} offen""")
        k.stamp_end(12, WS['STAMP'], 3, 1)
        k("s_endpgm")

    variant('B')
    k("L_qkv_vA:")
    variant('A')
    k(f"""L_qkv_loader:
s_cmp_eq_u32 s3, 5
s_cbranch_scc1 L_qkv_loadW
v_lshrrev_b32 v6, 3, v2
v_and_b32 v7, 7, v2               ; c'
v_xor_b32 v7, v7, v6
s_lshl_b32 s21, s17, 7            ; row0
v_add_u32 v6, s21, v6
v_mul_u32_u24 v6, 1280, v6
v_lshl_add_u32 v8, v7, 4, v6
""")

    def issue_x(st):
        base = (st % RING) * SLOT
        for i in range(0 if os.environ.get("NOLD1") else 16):
            k(f"s_mov_b32 m0, {base + i*1024}\ns_mov_b32 s26, {st*128 + i*8*1280}\nbuffer_load_dwordx4 v8, s[4:7], s26 offen lds")
    loader_schedule(k, "qkvx", NS, RING, 16, issue_x, first=2, ramp=2)
    k(f"""s_endpgm
L_qkv_loadW:
v_lshrrev_b32 v6, 4, v2           ; rl
v_and_b32 v7, 15, v2              ; c16'
v_lshlrev_b32 v9, 1, v6
v_xor_b32 v10, v7, v9             ; i even
v_xor_b32 v11, 8, v10             ; i odd: ^ (4<<1)
v_mul_u32_u24 v6, 3840, v6
v_lshl_add_u32 v8, v10, 4, v6
v_lshl_add_u32 v9, v11, 4, v6
s_lshl_b32 s24, s16, 8
""")

    def issue_w(st):
        base = (st % RING) * SLOT + 16384
        for ksl in range(0 if os.environ.get("NOLD1") else 2):
            for i in range(8):
                krow = 8 * (i & 3) + 4 * (i >> 2)
                off = (st * 2 + ksl) * 32 * 3840 + krow * 3840
                k(f"s_mov_b32 m0, {base + ksl*8192 + i*1024}\ns_add_u32 s26, s24, {off}\nbuffer_load_dwordx4 v{8 + (i & 1)}, s[8:11], s26 offen lds")
    loader_schedule(k, "qkvw", NS, RING, 16, issue_w, first=2, ramp=2)
    k("L_qkv_end:\ns_endpgm")
    return k, 256, 384, LDS


def gen_attn():
    k = Kern("attn_kernel", 200)
    SLOT = 49152
    LDS = 3 * SLOT
    Q1 = 8
    Q2 = 16
    KF = 20
    VF = 36
    SA, SB = 52, 68
    PA, PB = 84, 92
    OA, OB = 100, 116
    AC = 132
    T = 140
    k(f"""
s_cmp_ge_u32 s2, 256
s_cbranch_scc1 L_attn_end
s_load_dwordx2 s[12:13], s[0:1], {ARG['ws']}
s_load_dwordx2 s[44:45], s[0:1], {ARG['wo']}
s_load_dwordx4 s[48:51], s[0:1], {ARG['wg']}
s_load_dwordx2 s[46:47], s[0:1], {ARG['wd']}
v_lshrrev_b32 v1, 6, v0
v_and_b32 v2, 63, v0              ; lane
s_and_b32 s16, s2, 7              ; xcd
v_readfirstlane_b32 s3, v1        ; wave
s_lshr_b32 s17, s2, 3             ; idx 0..31
s_lshr_b32 s18, s17, 3
s_lshl_b32 s19, s16, 2
s_add_u32 s18, s18, s19           ; head
s_and_b32 s19, s17, 7
s_and_b32 s20, s3, 3              ; q group
s_lshr_b32 s21, s3, 2
v_lshlrev_b32 v3, 4, v2           ; lane*16
s_waitcnt lgkmcnt(0)
s_and_b32 s13, s13, 0xffff
s_mov_b32 s14, {WS_TOTAL}
s_mov_b32 s15, 0x00020000
s_mul_i32 s22, s18, {64*KVT}
s_add_u32 s22, s22, {WS['KV']}
s_mul_i32 s23, s3, 6144
s_add_u32 s24, s22, s23
""")

    def dma_round(r_static=None, sreg=None):
        slot = (r_static % 3) * SLOT
        for i in range(6):
            k(f"""s_add_u32 m0, s23, {slot + i*1024}
s_add_u32 s25, s24, {r_static*16*KVT + i*1024}
buffer_load_dwordx4 v3, s[12:15], s25 offen lds""")
    k.stamp(0)
    dma_round(0)
    k(f"""
s_lshl_b32 s26, s19, 3
s_lshl_b32 s27, s20, 1
s_add_u32 s26, s26, s27           ; first q tile
s_mul_i32 s27, s18, {64*QT}
s_mul_i32 s28, s26, {QT}
s_add_u32 s27, s27, s28
s_add_u32 s27, s27, {WS['QF']}
v_lshlrev_b32 v4, 3, v2           ; lane*8
buffer_load_dwordx4 v[{Q1}:{Q1+3}], v3, s[12:15], s27 offen
buffer_load_dwordx4 v[{Q1+4}:{Q1+7}], v3, s[12:15], s27 offen offset:{QT}
buffer_load_dwordx2 v[{Q2}:{Q2+1}], v4, s[12:15], s27 offen offset:1024
buffer_load_dwordx2 v[{Q2+2}:{Q2+3}], v4, s[12:15], s27 offen offset:{QT+1024}
""")
    k(f"s_lshl_b32 s42, s2, 3\ns_add_u32 s42, s42, s3\ns_add_u32 s43, s23, {2*SLOT}")
    dma_round(1)
    prep_job_part1(k, 42, 43, "ap")
    k(f"""
s_mul_i32 s29, s21, {8*KVT}
v_add_u32 v{AC}, s29, v3          ; aK1
v_add_u32 v{AC+1}, s29, v4        ; aK2
v_and_b32 v5, 31, v2              ; d
v_lshrrev_b32 v6, 5, v2           ; h
v_subrev_u32 v7, 16, v5
v_cmp_lt_u32 vcc, 20, v5
v_cndmask_b32 v5, v5, v7, vcc     ; dmap
v_mul_u32_u24 v7, 21, v6
v_add_u32 v5, v5, v7
v_lshlrev_b32 v5, 4, v5
v_add_u32 v{AC+2}, s29, v5        ; aV
v_cmp_lt_u32 s[30:31], 31, v2
""")
    for i in range(16):
        k(f"v_mov_b32 v{OA+i}, 0\nv_mov_b32 v{OB+i}, 0")
    for i in range(8):
        k(f"v_mov_b32 v{PB+i}, 0\nv_mov_b32 v{VF+8+i}, 0")
    k(f"""
s_cmp_eq_u32 s63, 5
s_cbranch_scc1 L_attn_w5
s_cmp_eq_u32 s63, 3
s_cbranch_scc1 L_attn_w3
s_waitcnt vmcnt(6)
L_attn_w3:
s_waitcnt vmcnt(9)
L_attn_w5:
s_waitcnt vmcnt(11)
v_cndmask_b32 v{Q2}, v{Q2}, 0, s[30:31]
v_cndmask_b32 v{Q2+1}, v{Q2+1}, 0, s[30:31]
v_cndmask_b32 v{Q2+2}, v{Q2+2}, 0, s[30:31]
v_cndmask_b32 v{Q2+3}, v{Q2+3}, 0, s[30:31]
s_barrier
ds_read_b128 v[{KF}:{KF+3}], v3
ds_read_b64 v[{KF+4}:{KF+5}], v4 offset:1024
s_waitcnt lgkmcnt(0)
""")
    k.stamp(1)
    for (Sx, qi) in ((SA, 0), (SB, 1)):
        k(f"""v_mfma_f32_32x32x16_bf16 v[{Sx}:{Sx+15}], v[{KF}:{KF+3}], v[{Q1+4*qi}:{Q1+4*qi+3}], 0
v_mfma_f32_32x32x8_bf16 v[{Sx}:{Sx+15}], v[{KF+4}:{KF+5}], v[{Q2+2*qi}:{Q2+2*qi+1}], v[{Sx}:{Sx+15}]""")
    for (Sx, qi) in ((SA, 0), (SB, 1)):
        m = T + qi
        k(f"v_max3_f32 v{m}, v{Sx}, v{Sx+1}, v{Sx+2}")
        for j in range(3, 15, 2):
            k(f"v_max3_f32 v{m}, v{m}, v{Sx+j}, v{Sx+j+1}")
        k(f"v_max_f32 v{m}, v{m}, v{Sx+15}")
        k(f"""v_mov_b32 v{T+2}, v{m}
s_nop 1
v_permlane32_swap_b32 v{T+2}, v{m}
s_nop 1
v_max_f32 v{m}, v{m}, v{T+2}
v_cvt_pk_bf16_f32 v{T+3}, v{m}, v{m}
v_lshlrev_b32 v{T+3}, 16, v{T+3}
v_sub_f32 v{T+4}, v{T+3}, v{m}                ; -(m - m_hi)
v_sub_f32 v{T+3}, 0, v{T+3}                   ; -m_hi
v_cvt_pk_bf16_f32 v{T+3}, v{T+3}, v{T+4}
v_cndmask_b32 v{Q2+2*qi}, v{Q2+2*qi}, v{T+3}, s[30:31]
""")
    k(f"""
ds_read_b128 v[{KF}:{KF+3}], v{AC}
ds_read_b64 v[{KF+4}:{KF+5}], v{AC+1} offset:1024
ds_read_b128 v[{VF}:{VF+3}], v{AC+2} offset:1536
ds_read_b128 v[{VF+4}:{VF+7}], v{AC+2} offset:2208
s_mov_b32 s32, 0                  ; round
v_add_u32 v{AC+3}, {SLOT}, v{AC}
v_add_u32 v{AC+4}, {SLOT}, v{AC+1}
v_add_u32 v{AC+5}, {SLOT}, v{AC+2}
s_waitcnt lgkmcnt(0)
v_mfma_f32_32x32x16_bf16 v[{SA}:{SA+15}], v[{KF}:{KF+3}], v[{Q1}:{Q1+3}], 0
v_mfma_f32_32x32x8_bf16 v[{SA}:{SA+15}], v[{KF+4}:{KF+5}], v[{Q2}:{Q2+1}], v[{SA}:{SA+15}]
s_nop 7
""")
    k.stamp(2)
    k("L_attn_round:")

    def exps(Sx, Px):
        r = []
        for i in range(8):
            r += [f"v_exp_f32 v{Sx+2*i}, v{Sx+2*i}", f"v_exp_f32 v{Sx+2*i+1}, v{Sx+2*i+1}"]
            if i > 0:
                r += [f"v_cvt_pk_bf16_f32 v{Px+i-1}, v{Sx+2*i-2}, v{Sx+2*i-1}"]
        r += [f"v_cvt_pk_bf16_f32 v{Px+7}, v{Sx+14}, v{Sx+15}"]
        return r

    def interleave(e, items):
        out = []
        it = sorted(items, key=lambda x: x[0])
        p = 0
        for idx, ins in enumerate(e):
            while p < len(it) and it[p][0] <= idx:
                out += it[p][1]
                p += 1
            out.append(ins)
        while p < len(it):
            out += it[p][1]
            p += 1
        return out

    for t in range(8):
        kc, kn = KF + 8 * (t & 1), KF + 8 * ((t + 1) & 1)
        vc, vp = VF + 8 * (t & 1), VF + 8 * ((t + 1) & 1)
        if t < 7:
            na, off = AC, (t + 1) * KVT
        else:
            na, off = AC + 3, 0
        pre = []
        if t == 7:
            l = k.label("nodma")
            l0 = k.label("nodma0")
            pre = ["s_waitcnt vmcnt(0)", "s_barrier", "s_cmp_eq_u32 s32, 1", f"s_cbranch_scc0 {l}"]
            k("\n".join(pre))
            dma_round(3)
            k(f"{l}:")
            k(f"s_cmp_eq_u32 s32, 0\ns_cbranch_scc0 {l0}")
            prep_job_part2(k, 43, "ap", 0)
            dma_round(2)
            k(f"{l0}:")
        e = exps(SA, PA)
        items = [
            (0, [f"v_mfma_f32_32x32x16_bf16 v[{SB}:{SB+15}], v[{kc}:{kc+3}], v[{Q1+4}:{Q1+7}], 0"]),
            (1, [f"ds_read_b128 v[{kn}:{kn+3}], v{na} offset:{off}",
                 f"ds_read_b64 v[{kn+4}:{kn+5}], v{na+1} offset:{off+1024}"]),
            (4, [f"v_mfma_f32_32x32x8_bf16 v[{SB}:{SB+15}], v[{kc+4}:{kc+5}], v[{Q2+2}:{Q2+3}], v[{SB}:{SB+15}]"]),
            (10, [f"v_mfma_f32_32x32x16_bf16 v[{OB}:{OB+15}], v[{vp}:{vp+3}], v[{PB}:{PB+3}], v[{OB}:{OB+15}]"]),
            (16, [f"v_mfma_f32_32x32x16_bf16 v[{OB}:{OB+15}], v[{vp+4}:{vp+7}], v[{PB+4}:{PB+7}], v[{OB}:{OB+15}]"]),
            (18, [f"ds_read_b128 v[{vp}:{vp+3}], v{na+2} offset:{off+1536}",
                  f"ds_read_b128 v[{vp+4}:{vp+7}], v{na+2} offset:{off+2208}"]),
        ]
        k("\n".join(interleave(e, items)))
        e = exps(SB, PB)
        items = [
            (0, ["s_waitcnt lgkmcnt(2)",
                 f"v_mfma_f32_32x32x16_bf16 v[{SA}:{SA+15}], v[{kn}:{kn+3}], v[{Q1}:{Q1+3}], 0"]),
            (4, [f"v_mfma_f32_32x32x8_bf16 v[{SA}:{SA+15}], v[{kn+4}:{kn+5}], v[{Q2}:{Q2+1}], v[{SA}:{SA+15}]"]),
            (10, [f"v_mfma_f32_32x32x16_bf16 v[{OA}:{OA+15}], v[{vc}:{vc+3}], v[{PA}:{PA+3}], v[{OA}:{OA+15}]"]),
            (16, [f"v_mfma_f32_32x32x16_bf16 v[{OA}:{OA+15}], v[{vc+4}:{vc+7}], v[{PA+4}:{PA+7}], v[{OA}:{OA+15}]"]),
            (22, ["s_waitcnt lgkmcnt(0)"]),
        ]
        k("\n".join(interleave(e, items)))
    k(f"""
s_add_u32 s32, s32, 1
v_mov_b32 v{AC}, v{AC+3}
v_mov_b32 v{AC+1}, v{AC+4}
v_mov_b32 v{AC+2}, v{AC+5}
s_mov_b32 s33, {SLOT}
s_cmp_eq_u32 s32, 2
s_cselect_b32 s33, {-2*SLOT & 0xffffffff}, s33
v_add_u32 v{AC+3}, s33, v{AC+3}
v_add_u32 v{AC+4}, s33, v{AC+4}
v_add_u32 v{AC+5}, s33, v{AC+5}
s_cmp_lt_u32 s32, 4
s_cbranch_scc1 L_attn_round
""")
    k.stamp(3)
    vl = VF + 8
    k(f"""
v_mfma_f32_32x32x16_bf16 v[{OB}:{OB+15}], v[{vl}:{vl+3}], v[{PB}:{PB+3}], v[{OB}:{OB+15}]
v_mfma_f32_32x32x16_bf16 v[{OB}:{OB+15}], v[{vl+4}:{vl+7}], v[{PB+4}:{PB+7}], v[{OB}:{OB+15}]
""")
    k(f"""
s_lshl_b32 s34, s20, 1
s_add_u32 s34, s34, s21           ; qg*2 + c
s_mul_i32 s35, s34, 3072
s_xor_b32 s36, s34, 1
s_mul_i32 s36, s36, 3072
v_add_u32 v4, s35, v3
v_add_u32 v4, {SLOT}, v4
v_add_u32 v5, s36, v3
v_add_u32 v5, {SLOT}, v5
s_cmp_eq_u32 s21, 0
s_cbranch_scc0 L_attn_c1
s_nop 7
s_nop 7
""")
    for j in range(3):
        k(f"ds_write_b128 v4, v[{OB+4*j}:{OB+4*j+3}] offset:{j*1024}")
    k("s_branch L_attn_m\nL_attn_c1:")
    for j in range(3):
        k(f"ds_write_b128 v4, v[{OA+4*j}:{OA+4*j+3}] offset:{j*1024}")
    for j in range(12):
        k(f"v_mov_b32 v{OA+j}, v{OB+j}")
    k(f"""L_attn_m:
s_waitcnt lgkmcnt(0)
s_barrier
""")
    for j in range(3):
        k(f"ds_read_b128 v[{SA+4*j}:{SA+4*j+3}], v5 offset:{j*1024}")
    k("s_waitcnt lgkmcnt(0)")
    for j in range(12):
        k(f"v_add_f32 v{OA+j}, v{OA+j}, v{SA+j}")
    k(f"""
v_mov_b32 v{T}, v{OA+8}
v_mov_b32 v{T+1}, v{OA+8}
s_nop 1
v_permlane32_swap_b32 v{T}, v{T+1}
s_nop 1
v_cndmask_b32 v{T}, v{T+1}, v{OA+8}, s[30:31]
v_rcp_f32 v{T}, v{T}
s_nop 0
""")
    for j in range(12):
        k(f"v_mul_f32 v{OA+j}, v{OA+j}, v{T}")
    for j in range(6):
        k(f"v_cvt_pk_bf16_f32 v{SB+j}, v{OA+2*j}, v{OA+2*j+1}")
    k(f"""
s_lshl_b32 s34, s19, 8
s_lshl_b32 s35, s20, 6
s_add_u32 s34, s34, s35
s_lshl_b32 s35, s21, 5
s_add_u32 s34, s34, s35           ; q base
v_and_b32 v4, 31, v2
v_add_u32 v4, s34, v4             ; q
v_lshrrev_b32 v5, 4, v4           ; rowblk
v_mul_u32_u24 v5, {20*1024}, v5
v_and_b32 v4, 15, v4
v_lshl_add_u32 v5, v4, 4, v5      ; rowblk*20480 + (q&15)*16
v_lshrrev_b32 v6, 5, v2           ; hh
s_mul_i32 s35, s18, 5
v_add_u32 v6, s35, v6             ; k4 for i=0
""")
    for i in range(3):
        k(f"""
v_add_u32 v7, {2*i}, v6           ; k4
v_lshrrev_b32 v8, 3, v7
v_lshlrev_b32 v8, 10, v8          ; ks*1024
v_and_b32 v9, 3, v7
v_lshl_add_u32 v8, v9, 8, v8      ; + g*256
v_bfe_u32 v9, v7, 2, 1
v_lshl_add_u32 v8, v9, 3, v8      ; + half*8
v_add_u32 v8, v8, v5
""")
        if i == 2:
            k("s_mov_b32 exec_lo, -1\ns_mov_b32 exec_hi, 0")
        k(f"buffer_store_dwordx2 v[{SB+2*i}:{SB+2*i+1}], v8, s[12:15], s37 offen" .replace("s37", "s38"))
    k.stamp_end(12, WS['STAMP'], 3, 2)
    k("L_attn_end:\ns_endpgm")
    idx = next(i for i, l in enumerate(k.lines) if 's_mul_i32 s35, s18, 5' in l)
    k.lines.insert(idx, f"  s_mov_b32 s38, {WS['OF']}")
    return k, 256, 512, LDS


def rowgemm_epilogue(k, name, final, T, ACC, R):
    A = ACC
    for cb in range(5):
        for j in range(2):
            a0, a1 = T + cb * 4 + 2 * j, T + cb * 4 + 2 * j + 1
            rr = R + 2 * cb + j
            k(f"""v_cvt_pk_bf16_f32 v{A}, v{a0}, v{a1}
v_lshlrev_b32 v{A+1}, 16, v{rr}
v_and_b32 v{A+2}, 0xffff0000, v{rr}
v_lshlrev_b32 v{a0}, 16, v{A}
v_and_b32 v{a1}, 0xffff0000, v{A}
v_add_f32 v{a0}, v{a0}, v{A+1}
v_add_f32 v{a1}, v{a1}, v{A+2}
v_cvt_pk_bf16_f32 v{rr}, v{a0}, v{a1}""")
        if final:
            k(f"buffer_store_dwordx2 v[{R+2*cb}:{R+2*cb+1}], v{T+20}, s[4:7], 0 offen offset:{cb*32}")
        else:
            k(f"buffer_store_dwordx2 v[{R+2*cb}:{R+2*cb+1}], v3, s[12:15], s{40+cb} offen")
    if not final:
        k(f"v_mov_b32 v{A}, 0\nv_mov_b32 v{A+1}, 0\nv_mov_b32 v{A+2}, {ONES_BF16}")
        for i in range(10):
            k(f"v_dot2c_f32_bf16 v{A}, v{R+i}, v{A+2}\nv_dot2c_f32_bf16 v{A+1}, v{R+i}, v{R+i}")
        k(f"""
s_nop 2
ds_swizzle_b32 v{A+3}, v{A} offset:0x401F
ds_swizzle_b32 v{A+4}, v{A+1} offset:0x401F
s_waitcnt lgkmcnt(0)
v_add_f32 v{A}, v{A}, v{A+3}
v_add_f32 v{A+1}, v{A+1}, v{A+4}
v_mov_b32 v{A+3}, v{A}
v_mov_b32 v{A+4}, v{A+1}
s_nop 1
v_permlane32_swap_b32 v{A+3}, v{A}
v_permlane32_swap_b32 v{A+4}, v{A+1}
s_nop 1
v_add_f32 v{A}, v{A}, v{A+3}
v_add_f32 v{A+1}, v{A+1}, v{A+4}
v_lshlrev_b32 v4, 6, v7           ; row*64
s_lshl_b32 s34, s18, 3
s_add_u32 s34, s34, {WS['STATS']}
v_cmp_gt_u32 vcc, 16, v2
s_and_saveexec_b64 s[36:37], vcc
buffer_store_dwordx2 v[{A}:{A+1}], v4, s[12:15], s34 offen
""")


def gen_rowgemm(name, KS, srcA, srcB, final):
    k = Kern(name, 168)
    NS = KS // 2
    RING = 12
    SLOT = 10 * 1024
    LDS = RING * SLOT
    PD = 8 if KS == 54 else 5
    ACC = 8
    T = 16
    R = 40
    C2 = 52
    FS = 92
    AS = 132
    AS = FS + 40
    k.nvgpr = AS + PD * 8
    k(f"""
s_cmp_ge_u32 s2, 256
s_cbranch_scc1 L_{name}_end
s_load_dwordx2 s[12:13], s[0:1], {ARG['ws']}
s_load_dwordx2 s[4:5], s[0:1], {ARG['out'] if final else ARG['x']}
v_lshrrev_b32 v1, 6, v0
v_and_b32 v2, 63, v0
s_and_b32 s16, s2, 7              ; xcd
v_readfirstlane_b32 s3, v1        ; wave
s_lshr_b32 s17, s2, 3             ; 0..31
s_and_b32 s18, s16, 1
s_lshl_b32 s18, s18, 2
s_and_b32 s19, s17, 3
s_add_u32 s18, s18, s19
s_lshr_b32 s19, s16, 1
s_lshl_b32 s19, s19, 3
s_lshr_b32 s20, s17, 2
s_add_u32 s19, s19, s20
v_lshlrev_b32 v3, 4, v2
s_waitcnt lgkmcnt(0)
s_and_b32 s13, s13, 0xffff
s_mov_b32 s14, {WS_TOTAL}
s_mov_b32 s15, 0x00020000
s_and_b32 s5, s5, 0xffff
s_mov_b32 s6, {S*D*2}
s_mov_b32 s7, 0x00020000
s_cmp_ge_u32 s3, 6
s_cbranch_scc1 L_{name}_pf
s_cmp_ge_u32 s3, 4
s_cbranch_scc1 L_{name}_loader
""")
    k.stamp(0)
    k(f"""
s_and_b32 s20, s3, 1              ; r
s_lshr_b32 s21, s3, 1             ; kk
s_lshl_b32 s22, s19, 2
s_lshl_b32 s23, s20, 1
s_add_u32 s22, s22, s23           ; first rb
s_mul_i32 s22, s22, {KS}
s_add_u32 s22, s22, s21
s_lshl_b32 s22, s22, 10
s_add_u32 s22, s22, {WS[srcA]}
v_add_u32 v4, {KS*1024}, v3       ; j=1 voffset
""")

    def aload(st):
        a = AS + (st % PD) * 8
        if os.environ.get("NOA"):
            return
        k(f"buffer_load_dwordx4 v[{a}:{a+3}], v3, s[12:15], s22 offen")
        k(f"buffer_load_dwordx4 v[{a+4}:{a+7}], v4, s[12:15], s22 offen")
        k("s_add_u32 s22, s22, 2048")
    for st in range(min(PD, NS)):
        aload(st)
    k(f"""
v_and_b32 v5, 15, v2
v_lshrrev_b32 v6, 4, v2
s_lshl_b32 s24, s20, 1
s_add_u32 s24, s24, s21
s_lshl_b32 s30, s19, 6
s_lshl_b32 s31, s24, 4
s_add_u32 s30, s30, s31
v_add_u32 v7, s30, v5             ; row
v_mul_u32_u24 v{T+20}, 1280, v7
s_mul_i32 s31, s18, 160
v_lshl_add_u32 v{T+20}, v6, 3, v{T+20}
v_add_u32 v{T+20}, s31, v{T+20}
s_lshl_b32 s32, s19, 2
s_add_u32 s32, s32, s24
s_mul_i32 s32, s32, {20*1024}
s_add_u32 s32, s32, {WS['HF']}
s_mul_i32 s33, s18, 5             ; first cbg
""")
    for cb in range(5):
        k(f"""s_add_u32 s34, s33, {cb}
s_lshr_b32 s35, s34, 1
s_lshl_b32 s35, s35, 10
s_and_b32 s34, s34, 1
s_lshl_b32 s34, s34, 3
s_add_u32 s35, s35, s34
s_add_u32 s{40+cb}, s35, s32""")
        if final:
            k(f"buffer_load_dwordx2 v[{R+2*cb}:{R+2*cb+1}], v3, s[12:15], s{40+cb} offen")
        else:
            k(f"buffer_load_dwordx2 v[{R+2*cb}:{R+2*cb+1}], v{T+20}, s[4:7], 0 offen offset:{cb*32}")
    for i in range(40):
        k(f"v_mov_b32 v{C2+i}, 0")
    k(f"""
s_mul_i32 s25, s21, 5120
v_add_u32 v8, s25, v3
v_add_u32 v9, {6*SLOT}, v8
""")
    nA_issued = min(PD, NS)

    def mf(st):
        b = FS + (st % 2) * 20
        a = AS + (st % PD) * 8
        if os.environ.get("NOMF"):
            return
        for j in range(2):
            for cb in range(5):
                c = C2 + (j * 5 + cb) * 4
                k(f"v_mfma_f32_16x16x32_bf16 v[{c}:{c+3}], v[{b+4*cb}:{b+4*cb+3}], v[{a+4*j}:{a+4*j+3}], v[{c}:{c+3}]")
    for st in range(NS + 1):
        if st < NS:
            k("s_barrier")
            sl = st % RING
            areg = 8 if sl < 6 else 9
            b = FS + (st % 2) * 20
            for cb in range(5):
                if os.environ.get("NODS"):
                    continue
                k(f"ds_read_b128 v[{b+4*cb}:{b+4*cb+3}], v{areg} offset:{(sl % 6)*SLOT + cb*1024}")
        if st >= 1:
            p = st - 1
            younger = 2 * (nA_issued - 1 - p)
            if p < min(PD, NS):
                younger += 5
            k(f"s_waitcnt vmcnt({min(younger, 63)})")
            mf(p)
            if p + PD < NS:
                aload(p + PD)
                nA_issued += 1
        if st < NS:
            k("s_waitcnt lgkmcnt(0)")
        if st == 1:
            k.stamp(1)
    k.stamp(2)
    k(f"""
s_barrier
s_mul_i32 s26, s3, 5120
s_xor_b32 s27, s3, 2
s_mul_i32 s27, s27, 5120
v_add_u32 v10, s26, v3
v_add_u32 v11, s27, v3
s_cmp_eq_u32 s21, 0
s_cbranch_scc0 L_{name}_k1
s_nop 4
""")
    for cb in range(5):
        c = C2 + (5 + cb) * 4
        k(f"ds_write_b128 v10, v[{c}:{c+3}] offset:{cb*1024}")
    for i in range(20):
        k(f"v_mov_b32 v{T+i}, v{C2+i}")
    k(f"s_branch L_{name}_k2\nL_{name}_k1:\ns_nop 4")
    for cb in range(5):
        c = C2 + cb * 4
        k(f"ds_write_b128 v10, v[{c}:{c+3}] offset:{cb*1024}")
    for i in range(20):
        k(f"v_mov_b32 v{T+i}, v{C2+20+i}")
    k(f"L_{name}_k2:\ns_waitcnt lgkmcnt(0)\ns_barrier")
    for cb in range(5):
        k(f"ds_read_b128 v[{C2+4*cb}:{C2+4*cb+3}], v11 offset:{cb*1024}")
    k("s_waitcnt lgkmcnt(0) vmcnt(0)")
    for i in range(20):
        k(f"v_add_f32 v{T+i}, v{T+i}, v{C2+i}")
    rowgemm_epilogue(k, name, final, T, ACC, R)
    k.stamp_end(12, WS['STAMP'], 3, 5 if final else 3)
    k("s_endpgm")
    k(f"""L_{name}_loader:
s_sub_u32 s20, s3, 4              ; L
s_mul_i32 s24, s18, {5*KS}
s_lshl_b32 s24, s24, 10
s_add_u32 s24, s24, {WS[srcB]}
""")
    for i in range(5):
        k(f"s_add_u32 s25, s24, {i*KS*1024}\nv_add_u32 v{8+i}, s25, v3")
    k(f"""
s_lshl_b32 s26, s20, 10           ; soffset = (2s+L)*1024
s_mul_i32 s27, s20, 5120
""")

    def issue(st):
        for i in range(5):
            if os.environ.get("NOB"):
                continue
            k(f"s_add_u32 m0, s27, {(st % RING)*SLOT + i*1024}\ns_add_u32 s28, s26, {st*2048}\nbuffer_load_dwordx4 v{8+i}, s[12:15], s28 offen lds")
    loader_schedule(k, name, NS, RING, 5, issue, first=3, ramp=3)
    k("s_endpgm")
    k(f"""L_{name}_pf:
s_lshr_b32 s20, s16, 1
s_lshl_b32 s20, s20, 5
s_add_u32 s20, s20, s17
s_mul_i32 s20, s20, {KS*1024}
s_add_u32 s20, s20, {WS[srcA]}
s_and_b32 s21, s16, 1
s_mul_i32 s21, s21, 20
s_add_u32 s21, s21, s17
s_mul_i32 s21, s21, {KS*1024}
s_add_u32 s21, s21, {WS[srcB]}
s_cmp_lt_u32 s17, 20
s_cselect_b32 s21, s21, s20
v_lshrrev_b32 v4, 4, v2
v_lshlrev_b32 v4, 10, v4
v_and_b32 v5, 7, v2
v_lshl_add_u32 v4, v5, 7, v4
v_mov_b32 v5, s20
v_mov_b32 v6, s21
v_and_b32 v7, 8, v2
v_cmp_eq_u32 vcc, 0, v7
v_cndmask_b32 v5, v6, v5, vcc
v_add_u32 v4, v4, v5
""")
    if PREFETCH:
        for n in range((KS + 3) // 4):
            if 4 * n + 4 > KS:
                k(f"v_cmp_gt_u32 vcc, {(KS - 4*n)*16}, v2\ns_and_b64 exec, exec, vcc")
            k(f"buffer_load_dword v{8+n}, v4, s[12:15], 0 offen\nv_add_u32 v4, 4096, v4")
    k(f"L_{name}_end:\ns_endpgm")
    return k, 256, 448, LDS


def gen_gateup():
    k = Kern("gateup_kernel", 96, nagpr=160)
    SLOT = 20480
    RING = 7
    NS = 14
    CS = RING * SLOT
    LDS = CS + 1024
    ACC = 8
    BF = 40
    MR = 72
    CSR = 76
    T = 84
    k(f"""
s_cmp_ge_u32 s2, 256
s_cbranch_scc1 L_gu_end
s_load_dwordx2 s[12:13], s[0:1], {ARG['ws']}
v_lshrrev_b32 v1, 6, v0
v_and_b32 v2, 63, v0
s_and_b32 s16, s2, 7              ; xcd
v_readfirstlane_b32 s3, v1        ; wave
s_lshr_b32 s17, s2, 3             ; 0..31
s_and_b32 s18, s16, 3
s_lshl_b32 s18, s18, 2
s_and_b32 s19, s17, 3
s_add_u32 s18, s18, s19           ; slice 0..15
s_lshr_b32 s19, s16, 2
s_lshl_b32 s19, s19, 3
s_lshr_b32 s20, s17, 2
s_add_u32 s19, s19, s20
v_lshlrev_b32 v3, 4, v2
s_mul_i32 s21, s18, 7
s_sub_u32 s22, s18, 12
s_max_i32 s22, s22, 0
s_sub_u32 s21, s21, s22           ; fb0
s_cmp_ge_u32 s18, 12
s_cselect_b32 s22, 6, 7
s_waitcnt lgkmcnt(0)
s_and_b32 s13, s13, 0xffff
s_mov_b32 s14, {WS_TOTAL}
s_mov_b32 s15, 0x00020000
s_cmp_ge_u32 s3, 4
s_cbranch_scc1 L_gu_loader
""")
    k.stamp(0)
    ST = ACC + 16
    cpr = [ST + 8 + i for i in range(8)] + [T + i for i in range(12)]
    k(f"""
s_lshl_b32 s29, s19, 3
s_lshl_b32 s30, s3, 1
s_add_u32 s29, s29, s30           ; rb0
s_mul_i32 s30, s29, {20*1024}
s_add_u32 s30, s30, {WS['HF']}
v_add_u32 v4, {20*1024}, v3
""")
    vm = []

    def aload(ks):
        off = (ks % 4) * 1024
        o = f" offset:{off}" if off else ""
        so = 41 + ks // 4
        return [f"buffer_load_dwordx4 a[{8*ks}:{8*ks+3}], v3, s[12:15], s{so} offen{o}",
                f"buffer_load_dwordx4 a[{8*ks+4}:{8*ks+7}], v4, s[12:15], s{so} offen{o}"]
    for i in range(5):
        k(f"s_add_u32 s{41+i}, s30, {i*4096}")
    NPRE = 3
    for ks in range(NPRE):
        k("\n".join(aload(ks)))
        vm += [("A", ks)] * 2
    k(f"""
v_and_b32 v5, 15, v2
v_lshrrev_b32 v6, 4, v2
s_lshl_b32 s31, s29, 4
v_add_u32 v7, s31, v5
v_lshlrev_b32 v7, 6, v7
v_lshl_add_u32 v{MR}, v6, 4, v7
v_cmp_le_u32 vcc, 112, v0
v_subrev_u32 v7, 112, v0
v_cndmask_b32 v7, v0, v7, vcc
v_mov_b32 v{MR+2}, 0
v_mov_b32 v{MR+3}, 1728
v_cndmask_b32 v{MR+2}, v{MR+2}, v{MR+3}, vcc
v_add_u32 v7, v7, v{MR+2}
s_lshl_b32 s31, s21, 4
v_add_u32 v7, s31, v7
v_lshlrev_b32 v{MR+1}, 2, v7
s_mov_b32 s31, {WS['STATS']}
s_mov_b32 s32, {WS['CSP']}
v_lshlrev_b32 v6, 4, v6
v_add_u32 v6, {CS}, v6
s_mul_i32 s33, s29, {54*1024}
s_add_u32 s33, s33, {WS['ACT']}
s_mov_b32 s34, 0
s_mov_b32 s35, 0
""")
    side_loads = [f"buffer_load_dwordx4 v[{ST}:{ST+3}], v{MR}, s[12:15], s31 offen",
                  f"buffer_load_dwordx4 v[{ST+4}:{ST+7}], v{MR}, s[12:15], s31 offen offset:1024"]
    for i in range(20):
        side_loads.append(f"buffer_load_dword v{cpr[i]}, v{MR+1}, s[12:15], s32 offen\ns_add_u32 s32, s32, {2*1728*4}")

    def setup_stats():
        r = []
        for rb in range(2):
            a = ST + 4 * rb
            r += f"""v_add_f32 v{a}, v{a}, v{a+2}
v_add_f32 v{a+1}, v{a+1}, v{a+3}
ds_swizzle_b32 v{a+2}, v{a} offset:0x401F
ds_swizzle_b32 v{a+3}, v{a+1} offset:0x401F
s_waitcnt lgkmcnt(0)
v_add_f32 v{a}, v{a}, v{a+2}
v_add_f32 v{a+1}, v{a+1}, v{a+3}
v_mov_b32 v{a+2}, v{a}
v_mov_b32 v{a+3}, v{a+1}
s_nop 1
v_permlane32_swap_b32 v{a+2}, v{a}
v_permlane32_swap_b32 v{a+3}, v{a+1}
s_nop 1
v_add_f32 v{a}, v{a}, v{a+2}
v_add_f32 v{a+1}, v{a+1}, v{a+3}
v_mul_f32 v{a}, {f32bits(1.0/640)}, v{a}
v_mul_f32 v{a+1}, {f32bits(1.0/640)}, v{a+1}
v_fma_f32 v{a+1}, -v{a}, v{a}, v{a+1}
v_max_f32 v{a+1}, 0, v{a+1}
v_add_f32 v{a+1}, {f32bits(1e-5)}, v{a+1}
v_rsq_f32 v{MR+rb}, v{a+1}
s_nop 0
v_mul_f32 v{MR+2+rb}, v{a}, v{MR+rb}""".split("\n")
        for i in range(1, 20):
            r.append(f"v_add_f32 v{cpr[0]}, v{cpr[0]}, v{cpr[i]}")
        r += f"""v_lshlrev_b32 v7, 2, v0
v_add_u32 v7, {CS}, v7
v_cmp_gt_u32 vcc, 224, v0
s_nop 3
s_and_saveexec_b64 s[36:37], vcc
ds_write_b32 v7, v{cpr[0]}
s_mov_b64 exec, s[36:37]
s_waitcnt lgkmcnt(0)""".split("\n")
        return r

    def epi(accset):
        r = []
        for rb in range(2):
            g = ACC + accset * 16 + rb * 4
            u = ACC + accset * 16 + (2 + rb) * 4
            for j in range(4):
                t = T + rb * 6 + (j & 1) * 3
                r += [f"v_mul_f32 v{t}, v{MR+2+rb}, v{CSR+j}",
                      f"v_mul_f32 v{t+1}, v{MR+2+rb}, v{CSR+4+j}",
                      f"v_fma_f32 v{g+j}, v{g+j}, v{MR+rb}, -v{t}",
                      f"v_fma_f32 v{u+j}, v{u+j}, v{MR+rb}, -v{t+1}",
                      f"v_mul_f32 v{t+2}, {f32bits(-math.log2(math.e))}, v{g+j}",
                      f"v_mul_f32 v{u+j}, v{u+j}, v{g+j}",
                      f"v_exp_f32 v{t+2}, v{t+2}",
                      f"NOP1",
                      f"v_add_f32 v{t+2}, 1.0, v{t+2}",
                      f"v_rcp_f32 v{t+2}, v{t+2}",
                      f"NOP1",
                      f"v_mul_f32 v{u+j}, v{u+j}, v{t+2}"]
            t = T + rb * 6
            r += [f"v_cvt_pk_bf16_f32 v{g}, v{u}, v{u+1}",
                  f"v_cvt_pk_bf16_f32 v{g+1}, v{u+2}, v{u+3}",
                  f"buffer_store_dwordx2 v[{g}:{g+1}], v3, s[12:15], s{38+rb} offen"]
        return [x for x in r if x != "NOP1"]

    def units(ins):
        return 2 if ins.startswith(("v_exp", "v_rcp", "v_rsq")) else 1

    def epi_setup():
        return f"""s_add_u32 s37, s21, s36
s_lshr_b32 s38, s37, 1
s_lshl_b32 s38, s38, 10
s_and_b32 s37, s37, 1
s_lshl_b32 s37, s37, 3
s_add_u32 s38, s38, s37
s_add_u32 s38, s38, s33
s_cmp_lt_u32 s36, s22
s_cselect_b32 s38, s38, 0x7ff00000
s_add_u32 s39, s38, {54*1024}
s_lshl_b32 s37, s36, 6
v_add_u32 v7, s37, v6
ds_read_b128 v[{CSR}:{CSR+3}], v7
ds_read_b128 v[{CSR+4}:{CSR+7}], v7 offset:448"""

    def next_stage():
        return f"""s_barrier
v_add_u32 v5, s35, v3
s_add_u32 s35, s35, {SLOT}
s_cmp_eq_u32 s35, {RING*SLOT}
s_cselect_b32 s35, 0, s35""".split("\n")

    def rd(ksr):
        b = BF + (ksr % 4) * 8
        kl = ksr % 10
        return [f"ds_read_b128 v[{b}:{b+3}], v5 offset:{kl*1024}",
                f"ds_read_b128 v[{b+4}:{b+7}], v5 offset:{10240 + kl*1024}"]

    def block(accset, mode, last=False):
        nonlocal_side = side_loads if mode == "first" else []
        if mode == "first":
            e = []
            stats_at = 13
        else:
            e = epi(accset ^ 1)
            k("s_sub_u32 s36, s34, 1")
            k(epi_setup())
        for ks in range(20):
            ksr = ks + 3
            gaps = [[], [], [], []]
            issue_next = not (ksr >= 20 and last)
            if issue_next:
                r2 = rd(ksr)
                if ksr % 10 == 0:
                    k("\n".join(next_stage()))
                gaps[0].append(r2[0])
                gaps[2].append(r2[1])
            if mode == "first":
                idx = max(i for i, t in enumerate(vm) if t == ("A", ks))
                k(f"s_waitcnt vmcnt({min(63, len(vm) - 1 - idx)})")
                al = aload(ks + NPRE) if ks + NPRE < 20 else None
                for gi in range(4):
                    if gi in (1, 3) and al:
                        gaps[gi].append(al[gi // 2])
                        vm.append(("A", ks + NPRE))
                    if gi in (0, 2) and nonlocal_side and ks < 12:
                        gaps[gi].append(nonlocal_side.pop(0))
                        vm.append(("S", 0))
                if ks == stats_at:
                    assert not nonlocal_side
                    k("s_waitcnt vmcnt(0)")
                    k("\n".join(setup_stats()))
            if mode == "first" and ks == stats_at:
                pass
            else:
                if last:
                    outstanding = min(19 - ks, 2) * 2
                else:
                    outstanding = 4
                if mode == "epi" and ks == 0:
                    outstanding += 2
                k(f"s_waitcnt lgkmcnt({outstanding})")
            b = BF + (ks % 4) * 8
            gi = 0
            for mat in range(2):
                for rb in range(2):
                    c = ACC + accset * 16 + (mat * 2 + rb) * 4
                    a = (ks * 2 + rb) * 4
                    src_c = "0" if ks == 0 else f"v[{c}:{c+3}]"
                    k(f"v_mfma_f32_16x16x32_bf16 v[{c}:{c+3}], v[{b+4*mat}:{b+4*mat+3}], a[{a}:{a+3}], {src_c}")
                    cap = 2 - len(gaps[gi])
                    if gaps[gi]:
                        k("\n".join(gaps[gi]))
                    if mode == "epi" and ks >= 2:
                        while e and cap >= units(e[0]):
                            cap -= units(e[0])
                            k(e.pop(0))
                        if e and cap > 0 and len(gaps[gi]) == 0 and units(e[0]) == 2 and cap == 2:
                            k(e.pop(0))
                    gi += 1
        if e:
            k("\n".join(e))
        k("s_add_u32 s34, s34, 1")
    k("\n".join(next_stage()))
    k.stamp(1)
    for ksr in range(3):
        k("\n".join(rd(ksr)))
    block(0, "first")
    k.stamp(2)
    k("s_mov_b32 s40, 0\nL_gu_loop:")
    block(1, "epi")
    block(0, "epi")
    k("s_add_u32 s40, s40, 1\ns_cmp_lt_u32 s40, 2\ns_cbranch_scc1 L_gu_loop")
    k.stamp(3)
    block(1, "epi")
    block(0, "epi", last=True)
    k.stamp(4)
    k("s_sub_u32 s36, s34, 1")
    k(epi_setup())
    k("s_waitcnt lgkmcnt(0)\ns_nop 7")
    k("\n".join(epi(0)))
    k.stamp_end(12, WS['STAMP'], 3, 4)
    k("s_endpgm")
    k(f"""L_gu_loader:
s_mul_i32 s23, s21, {20*1024}
s_mov_b32 s24, {WS['WGF']}
s_cmp_eq_u32 s3, 5
s_cselect_b32 s24, {WS['WUF']}, s24
s_add_u32 s23, s23, s24
s_sub_u32 s25, s3, 4
s_mul_i32 s25, s25, 10240
""")

    def issue(st):
        for g0 in range(0, 10, 4):
            k(f"s_add_u32 m0, s25, {(st % RING)*SLOT + g0*1024}\ns_add_u32 s28, s23, {st*10240 + g0*1024}")
            for i in range(g0, min(g0 + 4, 10)):
                o = f" offset:{(i-g0)*1024}" if i > g0 else ""
                k(f"buffer_load_dwordx4 v3, s[12:15], s28 offen{o} lds")
    loader_schedule(k, "gu", NS, RING, 10, issue, first=2, ramp=2, early=1)
    k("L_gu_end:\ns_endpgm")
    return k, 256, 384, LDS


HEADER = open("sequential_preLN__mha_block__swiglu_ffn__prompt.s.ref").read().split("; Override")[0].rstrip("\n").split("\n")


def build(verbose=False):
    ks = [gen_qkv(), gen_attn(), gen_rowgemm("oproj_kernel", 20, "OF", "WOF", False), gen_gateup(),
          gen_rowgemm("down_kernel", 54, "ACT", "WDF", True)]
    kernels = [x[0] for x in ks]
    launches = [(x[0].name, x[1], x[2], x[3]) for x in ks]
    return build_file(HEADER, kernels, launches, verbose)


if __name__ == "__main__":
    out = "sequential_preLN__mha_block__swiglu_ffn__prompt.s"
    if "-stamp" in sys.argv:
        Kern.STAMPS = True
        out = os.environ.get("STAMP_OUT", "stamp.s")
    txt = build(verbose="-v" in sys.argv)
    open(out, "w").write(txt)
    print("wrote", out, len(txt), "bytes; WS_TOTAL", WS_TOTAL)
```

```python
import sys, os
sys.path.insert(0, os.path.dirname(os.path.abspath(__file__)))
from asmlib import Kern, build_file

def _al(x, a=4096):
    return (x + a - 1) // a * a

S, D, H, DH, F = 2048, 640, 32, 20, 1728
KS_D, KS_F = D // 32, F // 32
QT = 1536
KVT = 2880
WS = {}
_off = 0
for _n, _sz in (("WQKVF", 120 * KS_D * 1024), ("WOF", 40 * KS_D * 1024), ("WGF", 108 * KS_D * 1024),
                ("WUF", 108 * KS_D * 1024), ("WDF", 40 * KS_F * 1024), ("CSP", KS_D * 2 * F * 4),
                ("QF", H * 64 * QT), ("KV", H * 64 * KVT + 8192), ("OF", 128 * KS_D * 1024),
                ("HF", 128 * KS_D * 1024), ("STATS", S * 8 * 8), ("ACT", 128 * KS_F * 1024), ("STAMP", 8 * 256 * 8 * 64)):
    WS[_n] = _off
    _off = _al(_off + _sz)
WS_TOTAL = _off

ARG = dict(x=0, wqkv=8, wo=16, bx=24, wg=32, wu=40, wd=48, out=56, dbg=64, ws=72)
QSCALE = 0x3EA52B2C
import struct, math
def f32bits(x):
    return struct.unpack("<I", struct.pack("<f", x))[0]
QSCALE = f32bits(DH ** -0.5 * math.log2(math.e))
ONES_BF16 = 0x3F803F80
PREFETCH = int(os.environ.get('PREFETCH', '1'))
PF_GRAN = int(os.environ.get('PF_GRAN', '128'))


def srd(k, s, argoff, nbytes, tmp=None):
    k(f"s_load_dwordx2 s[{s}:{s+1}], s[0:1], {argoff}")
    return f"""s_and_b32 s{s+1}, s{s+1}, 0xffff
s_mov_b32 s{s+2}, {nbytes}
s_mov_b32 s{s+3}, 0x00020000"""


def loader_schedule(k, name, NS, RING, n, issue, first=2, ramp=2, early=0):
    issued = min(first, NS)
    for st in range(issued):
        issue(st)
    for s in range(NS):
        w = issued - s - 1
        k(f"s_waitcnt vmcnt({min(63, n*w)})\ns_barrier")
        lim = min(NS, s + RING - early)
        ni = max(0, min(ramp, lim - issued))
        for _ in range(ni):
            issue(issued)
            issued += 1


def gen_prep():
    k = Kern("prep_kernel", 64)
    segs = [("wo", 640, 20, 8, 5, "WOF"), ("wd", 640, 54, 8, 5, "WDF"),
            ("wg", 1728, 20, 36, 3, "WGF"), ("wu", 1728, 20, 36, 3, "WUF")]
    total = sum(ks * nc for _, _, ks, nc, _, _ in segs)
    nwg = (total + 3) // 4
    k(f"""
s_cmp_ge_u32 s2, {nwg}
s_cbranch_scc1 L_prep_end
v_lshrrev_b32 v1, 6, v0
v_and_b32 v2, 63, v0
s_nop 0
v_readfirstlane_b32 s3, v1
s_lshl_b32 s20, s2, 2
s_add_u32 s20, s20, s3
s_mul_i32 s21, s3, 5120
s_cmp_ge_u32 s20, {total}
s_cbranch_scc1 L_prep_end
s_load_dwordx2 s[12:13], s[0:1], {ARG['ws']}
""")
    start = 0
    for i, (arg, N, KS, nch, nb, dst) in enumerate(segs):
        cnt = KS * nch
        k(f"""
s_cmp_lt_u32 s20, {start + cnt}
s_cbranch_scc0 L_prep_seg{i+1}
s_load_dwordx2 s[8:9], s[0:1], {ARG[arg]}
s_sub_u32 s20, s20, {start}
s_mov_b32 s10, {KS * 32 * N * 2}
s_mov_b32 s22, {N * 2}
s_mov_b32 s23, {KS}
s_mov_b32 s24, {nch}
s_mov_b32 s25, {WS[dst]}
s_mov_b32 s26, {(1 << 32) // nch + 1}
s_mov_b32 s27, {1 if arg == 'wu' else 0}
s_branch L_prep_nb{nb}
L_prep_seg{i+1}:""")
        start += cnt
    k("s_endpgm")
    for nb in (5, 3):
        Srow = nb * 32
        cpr = nb * 2
        mul, sh = (205, 11) if nb == 5 else (171, 10)
        k(f"""
L_prep_nb{nb}:
s_mul_hi_u32 s28, s20, s26
s_mul_i32 s29, s28, s24
s_sub_u32 s29, s20, s29           ; chunk
s_waitcnt lgkmcnt(0)
s_and_b32 s9, s9, 0xffff
s_mov_b32 s11, 0x00020000
s_and_b32 s13, s13, 0xffff
s_mov_b32 s14, {WS_TOTAL}
s_mov_b32 s15, 0x00020000
s_lshl_b32 s30, s28, 5
s_mul_i32 s30, s30, s22           ; ks*32*stride
s_mul_i32 s31, s29, {Srow}
s_add_u32 s30, s30, s31
""")
        for i in range(nb):
            k(f"""
v_add_u32 v3, {i*64}, v2
v_mul_u32_u24 v4, {mul}, v3
v_lshrrev_b32 v4, {sh}, v4        ; row
v_mul_u32_u24 v5, {cpr}, v4
v_sub_u32 v5, v3, v5              ; cc
v_mul_lo_u32 v4, v4, s22
v_lshl_add_u32 v4, v5, 4, v4
s_add_u32 m0, s21, {i*1024}
s_nop 0
buffer_load_dwordx4 v4, s[8:11], s30 offen lds
""")
        k(f"""
v_lshrrev_b32 v6, 4, v2           ; g
v_bfe_u32 v7, v2, 2, 2            ; r
v_lshl_add_u32 v6, v6, 2, v7
v_mul_u32_u24 v6, {Srow}, v6
v_and_b32 v7, 3, v2
v_lshl_add_u32 v6, v7, 3, v6
v_add_u32 v6, s21, v6
v_lshlrev_b32 v8, 4, v2           ; lane*16
s_mul_i32 s31, s29, {nb}          ; first col block
s_mul_i32 s31, s31, s23
s_add_u32 s31, s31, s28
s_lshl_b32 s31, s31, 10
s_add_u32 s31, s31, s25           ; dst offset of first block
s_lshl_b32 s32, s23, 10
s_waitcnt vmcnt(0)
""")
        for b in range(nb):
            k(f"""
ds_read_b64_tr_b16 v[{16+4*b}:{17+4*b}], v6 offset:{b*32}
ds_read_b64_tr_b16 v[{18+4*b}:{19+4*b}], v6 offset:{16*Srow + b*32}
""")
        k("s_waitcnt lgkmcnt(0)")
        for b in range(nb):
            k(f"""
buffer_store_dwordx4 v[{16+4*b}:{19+4*b}], v8, s[12:15], s31 offen
s_add_u32 s31, s31, s32
""")
        if nb == 3:
            k(f"""
v_mov_b32 v40, {ONES_BF16}
v_mov_b32 v41, {ONES_BF16}
v_mov_b32 v42, {ONES_BF16}
v_mov_b32 v43, {ONES_BF16}
s_lshl_b32 s33, s28, 1
s_add_u32 s33, s33, s27
s_mul_i32 s33, s33, 1728
s_mul_i32 s34, s29, 48
s_add_u32 s33, s33, s34
s_lshl_b32 s33, s33, 2
s_add_u32 s33, s33, {WS['CSP']}
v_lshrrev_b32 v9, 4, v2
v_lshlrev_b32 v9, 4, v9           ; g*16 bytes
v_and_b32 v10, 15, v2
v_cmp_eq_u32 vcc, 0, v10
""")
            for b in range(3):
                k(f"v_mfma_f32_16x16x32_bf16 v[{44+4*b}:{47+4*b}], v[{16+4*b}:{19+4*b}], v[40:43], 0")
            k("s_and_saveexec_b64 s[36:37], vcc")
            for b in range(3):
                k(f"buffer_store_dwordx4 v[{44+4*b}:{47+4*b}], v9, s[12:15], s33 offen offset:{b*64}")
        k("s_endpgm")
    k("L_prep_end:\ns_endpgm")
    return k, nwg, 256, 4 * 5120


def prep_job_part1(k, sjob, slds, tag):
    segs = [("wo", 44, 640, 20, 8, 5, "WOF"), ("wd", 46, 640, 54, 8, 5, "WDF"), ("wg", 48, 1728, 20, 36, 3, "WGF"), ("wu", 50, 1728, 20, 36, 3, "WUF")]
    total = sum(ks * nc for _, _, _, ks, nc, _, _ in segs)
    k(f"s_mov_b32 s63, 0\ns_cmp_ge_u32 s{sjob}, {total}\ns_cbranch_scc1 L_{tag}_p1done")
    start = 0
    for i, (arg, sp, N, KS, nch, nb, dst) in enumerate(segs):
        cnt = KS * nch
        if i < len(segs) - 1:
            k(f"s_cmp_lt_u32 s{sjob}, {start + cnt}\ns_cbranch_scc0 L_{tag}_seg{i+1}")
        k(f"""s_mov_b32 s8, s{sp}
s_and_b32 s9, s{sp+1}, 0xffff
s_sub_u32 s52, s{sjob}, {start}
s_mov_b32 s10, {KS * 32 * N * 2}
s_mov_b32 s53, {N * 2}
s_mov_b32 s54, {KS}
s_mov_b32 s55, {nch}
s_mov_b32 s56, {WS[dst]}
s_mov_b32 s57, {(1 << 32) // nch + 1}
s_mov_b32 s58, {1 if arg == 'wu' else 0}
s_branch L_{tag}_nb{nb}
L_{tag}_seg{i+1}:""")
        start += cnt
    for nb in (5, 3):
        Srow = nb * 32
        cpr = nb * 2
        mul, sh = (205, 11) if nb == 5 else (171, 10)
        k(f"""
L_{tag}_nb{nb}:
s_mov_b32 s11, 0x00020000
s_mov_b32 s63, {nb}
s_mul_hi_u32 s59, s52, s57        ; ks
s_mul_i32 s60, s59, s55
s_sub_u32 s60, s52, s60           ; chunk
s_lshl_b32 s61, s59, 5
s_mul_i32 s61, s61, s53
s_mul_i32 s62, s60, {Srow}
s_add_u32 s61, s61, s62
""")
        for i in range(nb):
            k(f"""v_add_u32 v52, {i*64}, v2
v_mul_u32_u24 v53, {mul}, v52
v_lshrrev_b32 v53, {sh}, v53
v_mul_u32_u24 v54, {cpr}, v53
v_sub_u32 v54, v52, v54
v_mul_lo_u32 v53, v53, s53
v_lshl_add_u32 v53, v54, 4, v53
s_add_u32 m0, s{slds}, {i*1024}
s_nop 0
buffer_load_dwordx4 v53, s[8:11], s61 offen lds""")
        k(f"s_branch L_{tag}_p1done" if nb == 5 else "")
    k(f"L_{tag}_p1done:")


def prep_job_part2(k, slds, tag, later):
    k(f"s_cmp_eq_u32 s63, 0\ns_cbranch_scc1 L_{tag}_p2done\ns_waitcnt vmcnt({later})\ns_cmp_eq_u32 s63, 3\ns_cbranch_scc1 L_{tag}_q3")
    for nb in (5, 3):
        Srow = nb * 32
        if nb == 3:
            k(f"L_{tag}_q3:")
        k(f"""
v_lshrrev_b32 v52, 4, v2
v_bfe_u32 v53, v2, 2, 2
v_lshl_add_u32 v52, v52, 2, v53
v_mul_u32_u24 v52, {Srow}, v52
v_and_b32 v53, 3, v2
v_lshl_add_u32 v52, v53, 3, v52
v_add_u32 v52, s{slds}, v52
s_mul_i32 s61, s60, {nb}
s_mul_i32 s61, s61, s54
s_add_u32 s61, s61, s59
s_lshl_b32 s61, s61, 10
s_add_u32 s61, s61, s56
s_lshl_b32 s62, s54, 10
""")
        for b in range(nb):
            k(f"""ds_read_b64_tr_b16 v[{56+4*b}:{57+4*b}], v52 offset:{b*32}
ds_read_b64_tr_b16 v[{58+4*b}:{59+4*b}], v52 offset:{16*Srow + b*32}""")
        k("s_waitcnt lgkmcnt(0)")
        for b in range(nb):
            k(f"buffer_store_dwordx4 v[{56+4*b}:{59+4*b}], v3, s[12:15], s61 offen sc0 sc1\ns_add_u32 s61, s61, s62")
        if nb == 3:
            k(f"""
v_mov_b32 v76, {ONES_BF16}
v_mov_b32 v77, {ONES_BF16}
v_mov_b32 v78, {ONES_BF16}
v_mov_b32 v79, {ONES_BF16}
s_lshl_b32 s61, s59, 1
s_add_u32 s61, s61, s58
s_mul_i32 s61, s61, 1728
s_mul_i32 s62, s60, 48
s_add_u32 s61, s61, s62
s_lshl_b32 s61, s61, 2
s_add_u32 s61, s61, {WS['CSP']}
v_lshrrev_b32 v53, 4, v2
v_lshlrev_b32 v53, 4, v53
v_and_b32 v54, 15, v2
v_cmp_eq_u32 vcc, 0, v54
""")
            for b in range(3):
                k(f"v_mfma_f32_16x16x32_bf16 v[{80+4*b}:{83+4*b}], v[{56+4*b}:{59+4*b}], v[76:79], 0")
            k("s_nop 7\ns_and_saveexec_b64 s[52:53], vcc")
            for b in range(3):
                k(f"buffer_store_dwordx4 v[{80+4*b}:{83+4*b}], v53, s[12:15], s61 offen offset:{b*64}")
            k("s_mov_b64 exec, s[52:53]")
        else:
            k(f"s_branch L_{tag}_p2done")
    k(f"L_{tag}_p2done:")


def gen_qkv():
    k = Kern("qkv_kernel", 200)
    SLOT = 32768
    RING = 4
    NS = 10
    STB = RING * SLOT
    LDS = STB + 1024 + 8192
    ACC = 8
    CSA = 72
    ONE = 88
    FS = 96
    T = 160
    SO = 168
    E = 176
    SUMA = 184
    GRAM = 192
    k(f"""
s_and_b32 s20, s2, 7              ; xcd
s_lshr_b32 s21, s2, 3
s_and_b32 s16, s20, 1
s_lshl_b32 s16, s16, 3
s_lshr_b32 s17, s21, 2
s_add_u32 s16, s16, s17
s_cmp_ge_u32 s2, 256
s_cbranch_scc1 L_qkv_end
s_load_dwordx2 s[4:5], s[0:1], {ARG['x']}
s_load_dwordx2 s[8:9], s[0:1], {ARG['wqkv']}
s_load_dwordx2 s[12:13], s[0:1], {ARG['ws']}
v_lshrrev_b32 v1, 6, v0
v_and_b32 v2, 63, v0              ; lane
s_lshr_b32 s17, s20, 1
v_readfirstlane_b32 s3, v1        ; wave
s_lshl_b32 s17, s17, 2
s_and_b32 s22, s21, 3
s_add_u32 s17, s17, s22
v_lshlrev_b32 v3, 4, v2           ; lane*16
v_and_b32 v4, 15, v2              ; l&15
v_lshrrev_b32 v5, 4, v2           ; g
s_mov_b32 s6, {S*D*2}
s_mov_b32 s7, 0x00020000
s_mov_b32 s10, {D*3*D*2}
s_mov_b32 s11, 0x00020000
s_mov_b32 s14, {WS_TOTAL}
s_mov_b32 s15, 0x00020000
s_cmp_eq_u32 s3, 6
s_cbranch_scc1 L_qkv_touch
s_cmp_ge_u32 s16, 15
s_cbranch_scc1 L_qkv_end
s_cmp_eq_u32 s3, 4
s_cbranch_scc1 L_qkv_loadX
s_cmp_eq_u32 s3, 5
s_cbranch_scc1 L_qkv_loadW
""")
    k.stamp(0)
    AD = T
    k(f"""
s_and_b32 s18, s3, 1              ; wr
s_lshr_b32 s19, s3, 1             ; wc
v_and_b32 v6, 7, v4
v_xor_b32 v7, v5, v6
v_xor_b32 v6, 4, v7
v_lshlrev_b32 v7, 4, v7
v_lshlrev_b32 v6, 4, v6
v_lshl_add_u32 v7, v4, 7, v7
v_lshl_add_u32 v6, v4, 7, v6
s_lshl_b32 s24, s18, 13
s_lshl_b32 s25, s19, 12
s_add_u32 s26, s24, s25
s_xor_b32 s25, s25, 4096
s_add_u32 s27, s24, s25
v_add_u32 v{AD}, s26, v7
v_add_u32 v{AD+1}, s26, v6
v_add_u32 v{AD+2}, s27, v7
v_add_u32 v{AD+3}, s27, v6
v_bfe_u32 v6, v2, 2, 2
v_lshl_add_u32 v6, v5, 2, v6
v_and_b32 v7, 7, v6
v_and_b32 v{E}, 3, v2
v_lshlrev_b32 v{E}, 3, v{E}
v_lshl_add_u32 v{E}, v6, 8, v{E}
v_add_u32 v{E}, 16384, v{E}
s_lshl_b32 s24, s19, 2
s_lshl_b32 s28, s18, 1            ; 2wr
""")
    for i in range(4):
        k(f"s_add_u32 s{44+i}, s28, {i}\ns_and_b32 s{44+i}, s{44+i}, 3")
        k(f"s_add_u32 s25, s24, s{44+i}\nv_xor_b32 v{E+1}, s25, v7\nv_lshl_add_u32 v{AD+4+i}, v{E+1}, 5, v{E}")
    for r in list(range(ACC, ACC + 80)) + list(range(FS + 32, FS + 64)) + list(range(SUMA, SUMA + 16)):
        k(f"v_mov_b32 v{r}, 0")
    for r in range(ONE, ONE + 4):
        k(f"v_mov_b32 v{r}, {ONES_BF16}")
    k(f"""
s_lshl_b32 s35, s17, 2
s_lshl_b32 s24, s18, 1
s_add_u32 s35, s35, s24
s_add_u32 s30, s35, s19
s_xor_b32 s24, s19, 1
s_add_u32 s31, s35, s24
s_lshl_b32 s24, s18, 8
s_lshl_b32 s25, s19, 7
s_add_u32 s32, s24, s25
s_add_u32 s32, s32, {STB}
s_xor_b32 s25, s25, 128
s_add_u32 s33, s24, s25
s_add_u32 s33, s33, {STB}         ; j=2
s_cmp_ge_u32 s16, 10
s_cbranch_scc1 L_qkv_vA
""")

    def reads(st, ksl, so):
        b = FS + st * 32
        r = []
        for j in range(4):
            r.append(f"ds_read_b128 v[{b+4*j}:{b+4*j+3}], v{AD + (j >> 1)*2 + ksl} offset:{so + (j & 1)*2048}")
        for i in range(4):
            r.append(f"ds_read_b64_tr_b16 v[{b+16+4*i}:{b+17+4*i}], v{AD+4+i} offset:{so + ksl*8192}")
            r.append(f"ds_read_b64_tr_b16 v[{b+18+4*i}:{b+19+4*i}], v{AD+4+i} offset:{so + ksl*8192 + 4096}")
        return r

    def mfmas(st, o, fillers):
        b = FS + st * 32
        f = list(fillers)
        seq = []
        on = f"v[{ONE}:{ONE+3}]"
        for i in range(4):
            w = f"v[{b+16+4*i}:{b+19+4*i}]"
            for j in range(4):
                a = f"v[{b+4*j}:{b+4*j+3}]"
                c = ACC + (i * 4 + j) * 4
                x, y = (w, a) if o == 'B' else (a, w)
                seq.append(f"v_mfma_f32_16x16x32_bf16 v[{c}:{c+3}], {x}, {y}, v[{c}:{c+3}]")
            if i < 2:
                c = CSA + 4 * i
                x, y = (w, on) if o == 'B' else (on, w)
                seq.append(f"v_mfma_f32_16x16x32_bf16 v[{c}:{c+3}], {x}, {y}, v[{c}:{c+3}]")
                a = f"v[{b+4*i}:{b+4*i+3}]"
                seq.append(f"v_mfma_f32_16x16x32_bf16 v[{SUMA+4*i}:{SUMA+4*i+3}], {on}, {a}, v[{SUMA+4*i}:{SUMA+4*i+3}]")
                seq.append(f"v_mfma_f32_16x16x32_bf16 v[{GRAM+4*i}:{GRAM+4*i+3}], {a}, {a}, v[{GRAM+4*i}:{GRAM+4*i+3}]")
        out = []
        if os.environ.get("NOMF1"):
            return []
        for m in seq:
            out.append(m)
            if f:
                out.append(f.pop(0))
        return out + f

    def addr_setup(o):
        if o == 'B':
            k(f"""
s_mov_b32 s36, 1.0
s_mov_b32 s37, {KVT}
s_mov_b32 s38, {WS['KV']}
s_sub_u32 s39, s16, 5
s_cmp_lt_u32 s16, 5
s_cselect_b32 s36, {QSCALE}, s36
s_cselect_b32 s37, {QT}, s37
s_cselect_b32 s38, {WS['QF']}, s38
s_cselect_b32 s39, s16, s39
s_lshl_b32 s40, s37, 6
s_mul_i32 s41, s30, s37
s_add_u32 s41, s41, s38
s_mul_i32 s42, s31, s37
s_add_u32 s42, s42, s38
s_lshl_b32 s39, s39, 5
s_lshl_b32 s24, s19, 4
s_add_u32 s39, s39, s24
""")
            for i in range(4):
                k(f"""
s_lshl_b32 s24, s{44+i}, 2
s_add_u32 s24, s24, s39
v_add_u32 v{E}, s24, v5
v_mul_u32_u24 v{E+1}, 205, v{E}
v_lshrrev_b32 v{E+1}, 10, v{E+1}
v_mul_u32_u24 v{E+2}, 5, v{E+1}
v_sub_u32 v{E+2}, v{E}, v{E+2}
v_lshrrev_b32 v{E+3}, 1, v{E+2}
v_lshlrev_b32 v{E+3}, 9, v{E+3}
v_and_b32 v{E+4}, 1, v{E+2}
v_lshl_add_u32 v{E+3}, v{E+4}, 3, v{E+3}
v_cmp_eq_u32 vcc, 4, v{E+2}
v_mov_b32 v{E+4}, 4
v_mov_b32 v{E+5}, 3
v_cndmask_b32 v{E+4}, v{E+4}, v{E+5}, vcc
v_mul_lo_u32 v{E+1}, v{E+1}, s40
v_add_u32 v{E+3}, v{E+3}, v{E+1}
v_lshlrev_b32 v{E+5}, v{E+4}, v4
v_add_u32 v{SO+2*i}, v{E+5}, v{E+3}
v_lshlrev_b32 v{E+6}, v{E+4}, 16
v_add_u32 v{SO+2*i+1}, v{E+6}, v{SO+2*i}
""")
        else:
            k(f"""
s_mul_i32 s41, s30, {KVT}
s_add_u32 s41, s41, {WS['KV']}
s_mul_i32 s42, s31, {KVT}
s_add_u32 s42, s42, {WS['KV']}
s_sub_u32 s39, s16, 10
s_lshl_b32 s39, s39, 7
s_lshl_b32 s24, s19, 6
s_add_u32 s39, s39, s24
s_mov_b32 s40, {64*KVT}
""")
            for i in range(4):
                k(f"""
s_lshl_b32 s24, s{44+i}, 4
s_add_u32 s24, s24, s39
v_add_u32 v{E}, s24, v4
v_mul_u32_u24 v{E+1}, 3277, v{E}
v_lshrrev_b32 v{E+1}, 16, v{E+1}
v_mul_u32_u24 v{E+2}, 20, v{E+1}
v_sub_u32 v{E+2}, v{E}, v{E+2}
v_and_b32 v{E+3}, 1, v5
v_mul_u32_u24 v{E+3}, 21, v{E+3}
v_add_u32 v{E+3}, v{E+3}, v{E+2}
v_lshlrev_b32 v{E+3}, 4, v{E+3}
v_lshrrev_b32 v{E+4}, 1, v5
v_lshl_add_u32 v{E+3}, v{E+4}, 3, v{E+3}
v_mul_lo_u32 v{E+1}, v{E+1}, s40
v_add_u32 v{E+5}, v{E+3}, v{E+1}
v_add_u32 v{SO+2*i}, 1536, v{E+5}
v_add_u32 v{SO+2*i+1}, 672, v{SO+2*i}
""")

    def variant(o):
        addr_setup(o)
        k(f"s_waitcnt lgkmcnt(0)\ns_and_b32 s13, s13, 0xffff")
        if o == 'B':
            consts()
        k.stamp(1)
        k(f"s_mov_b32 s26, 0\nL_qkv_loop{o}:")
        for half in range(2):
            so = half * SLOT
            k("s_barrier")
            r0 = reads(0, 0, so)
            k("\n".join(r0[:4]))
            k("\n".join(mfmas(1, o, r0[4:])))
            r1 = reads(1, 1, so)
            k("s_waitcnt lgkmcnt(0)")
            k("\n".join(mfmas(0, o, r1)))
            k("s_waitcnt lgkmcnt(0)")
        for i in range(8):
            k(f"v_xor_b32 v{AD+i}, {2*SLOT}, v{AD+i}")
        if Kern.STAMPS:
            for r in range(4):
                l = k.label("rs")
                k(f"s_cmp_eq_u32 s26, {r}\ns_cbranch_scc0 {l}")
                k.stamp(2 + r)
                k(f"{l}:")
        k(f"s_add_u32 s26, s26, 1\ns_cmp_lt_u32 s26, {NS//2}\ns_cbranch_scc1 L_qkv_loop{o}")
        k("\n".join(mfmas(1, o, [])))
        epilogue(o)

    def consts():
        k(f"""
s_cmp_ge_u32 s16, 8
s_cbranch_scc1 L_qkv_noconst
s_lshl_b32 s24, s16, 2
s_mul_i32 s24, s24, {64*KVT}
s_lshl_b32 s25, s17, 2
s_add_u32 s25, s25, s3
s_mul_i32 s25, s25, {KVT}
s_add_u32 s24, s24, s25
s_add_u32 s24, s24, {WS['KV']}
s_mov_b32 s43, {64*KVT}
v_and_b32 v{E}, 31, v2
v_lshrrev_b32 v{E+1}, 5, v2
v_mul_lo_u32 v{E+1}, v{E+1}, s43
v_lshl_add_u32 v{E+1}, v{E}, 3, v{E+1}
v_add_u32 v{E+1}, 1280, v{E+1}
v_add_u32 v{E+2}, {2*64*KVT}, v{E+1}
v_mov_b32 v{E+4}, {ONES_BF16}
v_mov_b32 v{E+5}, 0
buffer_store_dwordx2 v[{E+4}:{E+5}], v{E+1}, s[12:15], s24 offen
buffer_store_dwordx2 v[{E+4}:{E+5}], v{E+2}, s[12:15], s24 offen
v_and_b32 v{E}, 3, v2
v_bfe_u32 v{E+1}, v2, 2, 2
v_mul_lo_u32 v{E+1}, v{E+1}, s43
v_lshrrev_b32 v{E+2}, 1, v{E}
v_mul_u32_u24 v{E+2}, 672, v{E+2}
v_and_b32 v{E+3}, 1, v{E}
v_mul_u32_u24 v{E+3}, {21*16}, v{E+3}
v_add3_u32 v{E+1}, v{E+1}, v{E+2}, v{E+3}
v_add_u32 v{E+1}, {1536 + 20*16}, v{E+1}
buffer_store_dwordx4 v[{ONE}:{ONE+3}], v{E+1}, s[12:15], s24 offen
L_qkv_noconst:
""")

    def epilogue(o):
        k.stamp(6)
        STA = E + 8
        k(f"""s_nop 7
v_and_b32 v{E+2}, 3, v4
v_lshrrev_b32 v{E+3}, 2, v4
v_cmp_eq_u32 s[28:29], v{E+3}, v5
""")
        for jj in range(2):
            a, qq = STA + 2 * jj, STA + 2 * jj + 1
            gr = GRAM + 4 * jj
            k(f"""
v_cmp_eq_u32 vcc, 1, v{E+2}
v_cndmask_b32 v{qq}, v{gr}, v{gr+1}, vcc
v_cmp_eq_u32 vcc, 2, v{E+2}
v_cndmask_b32 v{qq}, v{qq}, v{gr+2}, vcc
v_cmp_eq_u32 vcc, 3, v{E+2}
v_cndmask_b32 v{qq}, v{qq}, v{gr+3}, vcc
v_cndmask_b32 v{qq}, 0, v{qq}, s[28:29]
""")
        k(f"""
ds_swizzle_b32 v{E}, v{STA+1} offset:0x401F
ds_swizzle_b32 v{E+1}, v{STA+3} offset:0x401F
s_lshl_b32 s24, s3, 11
s_add_u32 s24, s24, {STB+1024}
v_add_u32 v{E+4}, s24, v3
s_xor_b32 s24, s3, 1
s_lshl_b32 s24, s24, 11
s_add_u32 s24, s24, {STB+1024}
v_add_u32 v{E+5}, s24, v3
ds_write_b128 v{E+4}, v[{CSA}:{CSA+3}]
ds_write_b128 v{E+4}, v[{CSA+4}:{CSA+7}] offset:1024
s_waitcnt lgkmcnt(2)
v_add_f32 v{STA+1}, v{STA+1}, v{E}
v_add_f32 v{STA+3}, v{STA+3}, v{E+1}
v_mov_b32 v{E}, v{STA+1}
v_mov_b32 v{E+1}, v{STA+3}
s_nop 1
v_permlane32_swap_b32 v{E}, v{STA+1}
v_permlane32_swap_b32 v{E+1}, v{STA+3}
s_nop 1
v_add_f32 v{STA+1}, v{STA+1}, v{E}
v_add_f32 v{STA+3}, v{STA+3}, v{E+1}
""")
        for jj in range(2):
            a, qq = STA + 2 * jj, STA + 2 * jj + 1
            k(f"""v_mul_f32 v{a}, {f32bits(1.0/640)}, v{SUMA+4*jj}
v_mul_f32 v{qq}, {f32bits(1.0/640)}, v{qq}
v_fma_f32 v{qq}, -v{a}, v{a}, v{qq}
v_max_f32 v{qq}, 0, v{qq}
v_add_f32 v{qq}, {f32bits(1e-5)}, v{qq}
v_rsq_f32 v{qq}, v{qq}
s_nop 0
v_mul_f32 v{a}, v{a}, v{qq}""")
        k(f"""
v_lshlrev_b32 v{E}, 2, v4
v_add_u32 v{E}, s32, v{E}
ds_write_b32 v{E}, v{STA+1}
ds_write_b32 v{E}, v{STA} offset:512
ds_write_b32 v{E}, v{STA+3} offset:64
ds_write_b32 v{E}, v{STA+2} offset:576
s_waitcnt lgkmcnt(0)
s_barrier
ds_read_b128 v[{CSA+8}:{CSA+11}], v{E+5}
ds_read_b128 v[{CSA+12}:{CSA+15}], v{E+5} offset:1024
""")
        R = FS
        if o == 'B':
            k(f"v_lshlrev_b32 v{E}, 2, v4\nv_add_u32 v{E+1}, s33, v{E}\nv_add_u32 v{E}, s32, v{E}")
            for j in range(4):
                k(f"ds_read_b32 v{R+2*j}, v{E + (j >> 1)} offset:{(j & 1)*64}\nds_read_b32 v{R+2*j+1}, v{E + (j >> 1)} offset:{512+(j & 1)*64}")
            k("s_waitcnt lgkmcnt(0)")
            for j in range(4):
                k(f"v_mul_f32 v{R+2*j}, s36, v{R+2*j}\nv_mul_f32 v{R+2*j+1}, s36, v{R+2*j+1}")
            for i in range(4):
                cs = CSA + 4 * i
                for j in range(4):
                    c = ACC + (i * 4 + j) * 4
                    rm = f"v[{R+2*j}:{R+2*j+1}]"
                    for h in range(2):
                        t = E + 2 + 2 * h
                        k(f"v_pk_mul_f32 v[{t}:{t+1}], v[{cs+2*h}:{cs+2*h+1}], {rm} op_sel:[0,1] op_sel_hi:[1,1]")
                        k(f"v_pk_fma_f32 v[{c+2*h}:{c+2*h+1}], v[{c+2*h}:{c+2*h+1}], {rm}, v[{t}:{t+1}] op_sel:[0,0,0] op_sel_hi:[1,0,1] neg_lo:[0,0,1] neg_hi:[0,0,1]")
                    k(f"""v_cvt_pk_bf16_f32 v{c}, v{c}, v{c+1}
v_cvt_pk_bf16_f32 v{c+1}, v{c+2}, v{c+3}
buffer_store_dwordx2 v[{c}:{c+1}], v{SO+2*i+(j & 1)}, s[12:15], s{41 + (j >> 1)} offen""")
        else:
            k(f"v_lshlrev_b32 v{E}, 4, v5\nv_add_u32 v{E+1}, s33, v{E}\nv_add_u32 v{E}, s32, v{E}")
            for j in range(4):
                k(f"ds_read_b128 v[{R+8*j}:{R+8*j+3}], v{E + (j >> 1)} offset:{(j & 1)*64}\nds_read_b128 v[{R+8*j+4}:{R+8*j+7}], v{E + (j >> 1)} offset:{512+(j & 1)*64}")
            k("s_waitcnt lgkmcnt(0)")
            for i in range(4):
                cs = CSA + 4 * i
                for j in range(4):
                    c = ACC + (i * 4 + j) * 4
                    for h in range(2):
                        t = E + 2 + 2 * h
                        k(f"v_pk_mul_f32 v[{t}:{t+1}], v[{R+8*j+4+2*h}:{R+8*j+5+2*h}], v[{cs}:{cs+1}]")
                        k(f"v_pk_fma_f32 v[{c+2*h}:{c+2*h+1}], v[{c+2*h}:{c+2*h+1}], v[{R+8*j+2*h}:{R+8*j+2*h+1}], v[{t}:{t+1}] neg_lo:[0,0,1] neg_hi:[0,0,1]")
                    k(f"""v_cvt_pk_bf16_f32 v{c}, v{c}, v{c+1}
v_cvt_pk_bf16_f32 v{c+1}, v{c+2}, v{c+3}
buffer_store_dwordx2 v[{c}:{c+1}], v{SO+2*i+(j & 1)}, s[12:15], s{41 + (j >> 1)} offen""")
        k.stamp_end(12, WS['STAMP'], 3, 1)
        k("s_endpgm")

    variant('B')
    k("L_qkv_vA:")
    variant('A')
    k(f"""L_qkv_loadX:
v_lshrrev_b32 v6, 3, v2
v_and_b32 v7, 7, v2
v_xor_b32 v7, v7, v6
s_lshl_b32 s21, s17, 7
v_add_u32 v6, s21, v6
v_mul_u32_u24 v6, 1280, v6
v_lshl_add_u32 v8, v7, 4, v6
s_waitcnt lgkmcnt(0)
s_and_b32 s5, s5, 0xffff
""")

    def issue_x(st):
        base = (st % RING) * SLOT
        for i in range(0 if os.environ.get("NOLD1") else 16):
            k(f"s_mov_b32 m0, {base + i*1024}\ns_mov_b32 s26, {st*128 + i*8*1280}\nbuffer_load_dwordx4 v8, s[4:7], s26 offen lds")
    loader_schedule(k, "qkvx", NS, RING, 16, issue_x, first=2, ramp=2)
    k(f"""s_endpgm
L_qkv_loadW:
v_lshrrev_b32 v6, 4, v2
v_and_b32 v7, 15, v2
v_lshlrev_b32 v9, 1, v6
v_xor_b32 v10, v7, v9
v_xor_b32 v11, 8, v10
v_mul_u32_u24 v6, 3840, v6
v_lshl_add_u32 v8, v10, 4, v6
v_lshl_add_u32 v9, v11, 4, v6
s_lshl_b32 s24, s16, 8
s_waitcnt lgkmcnt(0)
s_and_b32 s9, s9, 0xffff
""")

    def issue_w(st):
        base = (st % RING) * SLOT + 16384
        for ksl in range(0 if os.environ.get("NOLD1") else 2):
            for i in range(8):
                krow = 8 * (i & 3) + 4 * (i >> 2)
                off = (st * 2 + ksl) * 32 * 3840 + krow * 3840
                k(f"s_mov_b32 m0, {base + ksl*8192 + i*1024}\ns_add_u32 s26, s24, {off}\nbuffer_load_dwordx4 v{8 + (i & 1)}, s[8:11], s26 offen lds")
    loader_schedule(k, "qkvw", NS, RING, 16, issue_w, first=2, ramp=2)
    k("s_endpgm")
    k(f"""L_qkv_touch:
s_lshr_b32 s22, s20, 1
s_mul_i32 s22, s22, {512*1280}
s_mul_i32 s23, s21, {160*128}     ; + share
s_add_u32 s22, s22, s23
v_lshlrev_b32 v6, 7, v2           ; lane*128
s_mul_i32 s24, s21, {20*3840}
s_and_b32 s25, s20, 1
s_lshl_b32 s25, s25, 11
s_add_u32 s24, s24, s25
v_lshrrev_b32 v7, 4, v2
v_mul_u32_u24 v7, 3840, v7
v_and_b32 v8, 15, v2
v_lshl_add_u32 v7, v8, 7, v7
s_waitcnt lgkmcnt(0)
s_and_b32 s5, s5, 0xffff
s_and_b32 s9, s9, 0xffff
""")
    if PREFETCH:
        for n in range(5):
            k(f"buffer_load_dword v{16+n}, v7, s[8:11], s24 offen\ns_add_u32 s24, s24, {4*3840}")
        for n in range(3):
            if n == 2:
                k("s_mov_b32 exec_lo, -1\ns_mov_b32 exec_hi, 0")
            k(f"buffer_load_dword v{24+n}, v6, s[4:7], s22 offen\ns_add_u32 s22, s22, 8192")
    k("L_qkv_end:\ns_endpgm")
    return k, 256, 448, LDS


def gen_attn():
    k = Kern("attn_kernel", 160)
    SLOT = 49152
    PSCR = 3 * SLOT
    LDS = PSCR + 2 * 5120
    Q1 = 8
    Q2 = 16
    KF = 20
    VF = 36
    SA, SB = 52, 68
    PA, PB = 84, 92
    OA, OB = 100, 116
    AC = 132
    T = 140
    k(f"""
s_cmp_ge_u32 s2, 256
s_cbranch_scc1 L_attn_end
s_load_dwordx2 s[12:13], s[0:1], {ARG['ws']}
v_lshrrev_b32 v1, 6, v0
v_and_b32 v2, 63, v0              ; lane
s_and_b32 s16, s2, 7              ; xcd
v_readfirstlane_b32 s3, v1        ; wave
s_lshr_b32 s17, s2, 3             ; idx 0..31
s_lshr_b32 s18, s17, 3
s_lshl_b32 s19, s16, 2
s_add_u32 s18, s18, s19           ; head
s_and_b32 s19, s17, 7
v_lshlrev_b32 v3, 4, v2           ; lane*16
s_mul_i32 s22, s18, {64*KVT}
s_add_u32 s22, s22, {WS['KV']}
s_mul_i32 s23, s3, 6144
s_add_u32 s24, s22, s23
s_cmp_ge_u32 s3, 8
s_cbranch_scc1 L_attn_prep
s_and_b32 s20, s3, 3              ; q group
s_lshr_b32 s21, s3, 2
s_lshl_b32 s26, s19, 3
s_lshl_b32 s27, s20, 1
s_add_u32 s26, s26, s27           ; first q tile
s_mul_i32 s27, s18, {64*QT}
s_mul_i32 s28, s26, {QT}
s_add_u32 s27, s27, s28
s_add_u32 s27, s27, {WS['QF']}
v_lshlrev_b32 v4, 3, v2           ; lane*8
s_mov_b32 s14, {WS_TOTAL}
s_mov_b32 s15, 0x00020000
s_waitcnt lgkmcnt(0)
s_and_b32 s13, s13, 0xffff
""")

    def dma_round(r):
        slot = (r % 3) * SLOT
        for g0 in (0, 4):
            k(f"s_add_u32 m0, s23, {slot + g0*1024}\ns_add_u32 s25, s24, {r*16*KVT + g0*1024}")
            for i in range(g0, min(g0 + 4, 6)):
                o = f" offset:{(i-g0)*1024}" if i > g0 else ""
                k(f"buffer_load_dwordx4 v3, s[12:15], s25 offen{o} lds")
    k.stamp(0)
    dma_round(0)
    k(f"""
buffer_load_dwordx4 v[{Q1}:{Q1+3}], v3, s[12:15], s27 offen
buffer_load_dwordx4 v[{Q1+4}:{Q1+7}], v3, s[12:15], s27 offen offset:{QT}
buffer_load_dwordx2 v[{Q2}:{Q2+1}], v4, s[12:15], s27 offen offset:1024
buffer_load_dwordx2 v[{Q2+2}:{Q2+3}], v4, s[12:15], s27 offen offset:{QT+1024}
""")
    dma_round(1)
    dma_round(2)
    k(f"""
s_mul_i32 s29, s21, {8*KVT}
v_add_u32 v{AC}, s29, v3          ; aK1
v_add_u32 v{AC+1}, s29, v4        ; aK2
v_and_b32 v5, 31, v2              ; d
v_lshrrev_b32 v6, 5, v2           ; h
v_subrev_u32 v7, 16, v5
v_cmp_lt_u32 vcc, 20, v5
v_cndmask_b32 v5, v5, v7, vcc     ; dmap
v_mul_u32_u24 v7, 21, v6
v_add_u32 v5, v5, v7
v_lshlrev_b32 v5, 4, v5
v_add_u32 v{AC+2}, s29, v5        ; aV
v_cmp_lt_u32 s[30:31], 31, v2
v_add_u32 v{AC+3}, {SLOT}, v{AC}
v_add_u32 v{AC+4}, {SLOT}, v{AC+1}
v_add_u32 v{AC+5}, {SLOT}, v{AC+2}
s_mov_b32 s32, 0                  ; round
""")
    for i in range(12):
        k(f"v_mov_b32 v{OA+i}, 0\nv_mov_b32 v{OB+i}, 0")
    for i in range(8):
        k(f"v_mov_b32 v{PB+i}, 0\nv_mov_b32 v{VF+8+i}, 0")
    k(f"""
s_waitcnt vmcnt(12)
v_cndmask_b32 v{Q2}, v{Q2}, 0, s[30:31]
v_cndmask_b32 v{Q2+1}, v{Q2+1}, 0, s[30:31]
v_cndmask_b32 v{Q2+2}, v{Q2+2}, 0, s[30:31]
v_cndmask_b32 v{Q2+3}, v{Q2+3}, 0, s[30:31]
s_barrier
ds_read_b128 v[{KF+8}:{KF+11}], v3
ds_read_b64 v[{KF+12}:{KF+13}], v4 offset:1024
ds_read_b128 v[{KF}:{KF+3}], v{AC}
ds_read_b64 v[{KF+4}:{KF+5}], v{AC+1} offset:1024
ds_read_b128 v[{VF}:{VF+3}], v{AC+2} offset:1536
ds_read_b128 v[{VF+4}:{VF+7}], v{AC+2} offset:2208
s_waitcnt lgkmcnt(4)
""")
    k.stamp(1)

    def setm(m, q2reg, t):
        return f"""v_cvt_pk_bf16_f32 v{t}, v{m}, v{m}
v_lshlrev_b32 v{t}, 16, v{t}
v_sub_f32 v{t+1}, v{t}, v{m}
v_sub_f32 v{t}, 0, v{t}
v_cvt_pk_bf16_f32 v{t}, v{t}, v{t+1}
v_cndmask_b32 v{q2reg}, v{q2reg}, v{t}, s[30:31]"""

    def maxtree(m, Sx, first):
        r = []
        if first:
            r.append(f"v_max3_f32 v{m}, v{Sx}, v{Sx+1}, v{Sx+2}")
            rest = range(3, 15, 2)
            for j in rest:
                r.append(f"v_max3_f32 v{m}, v{m}, v{Sx+j}, v{Sx+j+1}")
            r.append(f"v_max_f32 v{m}, v{m}, v{Sx+15}")
        else:
            for j in range(0, 16, 2):
                r.append(f"v_max3_f32 v{m}, v{m}, v{Sx+j}, v{Sx+j+1}")
        return r

    def xhalf_max(m, t):
        return f"""v_mov_b32 v{t}, v{m}
s_nop 1
v_permlane32_swap_b32 v{t}, v{m}
s_nop 1
v_max_f32 v{m}, v{m}, v{t}"""
    for (Sx, qi) in ((SA, 0), (SB, 1)):
        k(f"""v_mfma_f32_32x32x16_bf16 v[{Sx}:{Sx+15}], v[{KF+8}:{KF+11}], v[{Q1+4*qi}:{Q1+4*qi+3}], 0
v_mfma_f32_32x32x8_bf16 v[{Sx}:{Sx+15}], v[{KF+12}:{KF+13}], v[{Q2+2*qi}:{Q2+2*qi+1}], v[{Sx}:{Sx+15}]""")
    for (Sx, qi) in ((SA, 0), (SB, 1)):
        m = T + qi
        k("\n".join(maxtree(m, Sx, True)))
        k(xhalf_max(m, T + 2))
        k(setm(m, Q2 + 2 * qi, T + 3))
    k(f"""
s_waitcnt lgkmcnt(0)
v_mfma_f32_32x32x16_bf16 v[{SA}:{SA+15}], v[{KF}:{KF+3}], v[{Q1}:{Q1+3}], 0
v_mfma_f32_32x32x8_bf16 v[{SA}:{SA+15}], v[{KF+4}:{KF+5}], v[{Q2}:{Q2+1}], v[{SA}:{SA+15}]
s_nop 7
""")
    k.stamp(2)
    k("L_attn_round:")

    def exps(Sx, Px):
        r = []
        for i in range(8):
            r += [f"v_exp_f32 v{Sx+2*i}, v{Sx+2*i}", f"v_exp_f32 v{Sx+2*i+1}, v{Sx+2*i+1}"]
            if i > 0:
                r += [f"v_cvt_pk_bf16_f32 v{Px+i-1}, v{Sx+2*i-2}, v{Sx+2*i-1}"]
        r += [f"v_cvt_pk_bf16_f32 v{Px+7}, v{Sx+14}, v{Sx+15}"]
        return r

    def interleave(e, items):
        out = []
        it = sorted(items, key=lambda x: x[0])
        p = 0
        for idx, ins in enumerate(e):
            while p < len(it) and it[p][0] <= idx:
                out += it[p][1]
                p += 1
            out.append(ins)
        while p < len(it):
            out += it[p][1]
            p += 1
        return out

    for t in range(8):
        kc, kn = KF + 8 * (t & 1), KF + 8 * ((t + 1) & 1)
        vc, vp = VF + 8 * (t & 1), VF + 8 * ((t + 1) & 1)
        if t < 7:
            na, off = AC, (t + 1) * KVT
        else:
            na, off = AC + 3, 0
        if t == 7:
            l = k.label("nodma")
            k(f"s_waitcnt vmcnt(0)\ns_barrier\ns_cmp_eq_u32 s32, 1\ns_cbranch_scc0 {l}")
            dma_round(3)
            k(f"{l}:")
        e = exps(SA, PA)
        items = [
            (0, [f"v_mfma_f32_32x32x16_bf16 v[{SB}:{SB+15}], v[{kc}:{kc+3}], v[{Q1+4}:{Q1+7}], 0"]),
            (1, [f"ds_read_b128 v[{kn}:{kn+3}], v{na} offset:{off}",
                 f"ds_read_b64 v[{kn+4}:{kn+5}], v{na+1} offset:{off+1024}"]),
            (4, [f"v_mfma_f32_32x32x8_bf16 v[{SB}:{SB+15}], v[{kc+4}:{kc+5}], v[{Q2+2}:{Q2+3}], v[{SB}:{SB+15}]"]),
            (10, [f"v_mfma_f32_32x32x16_bf16 v[{OB}:{OB+15}], v[{vp}:{vp+3}], v[{PB}:{PB+3}], v[{OB}:{OB+15}]"]),
            (16, [f"v_mfma_f32_32x32x16_bf16 v[{OB}:{OB+15}], v[{vp+4}:{vp+7}], v[{PB+4}:{PB+7}], v[{OB}:{OB+15}]"]),
            (18, [f"ds_read_b128 v[{vp}:{vp+3}], v{na+2} offset:{off+1536}",
                  f"ds_read_b128 v[{vp+4}:{vp+7}], v{na+2} offset:{off+2208}"]),
        ]
        k("\n".join(interleave(e, items)))
        e = exps(SB, PB)
        items = [
            (0, ["s_waitcnt lgkmcnt(2)",
                 f"v_mfma_f32_32x32x16_bf16 v[{SA}:{SA+15}], v[{kn}:{kn+3}], v[{Q1}:{Q1+3}], 0"]),
            (4, [f"v_mfma_f32_32x32x8_bf16 v[{SA}:{SA+15}], v[{kn+4}:{kn+5}], v[{Q2}:{Q2+1}], v[{SA}:{SA+15}]"]),
            (10, [f"v_mfma_f32_32x32x16_bf16 v[{OA}:{OA+15}], v[{vc}:{vc+3}], v[{PA}:{PA+3}], v[{OA}:{OA+15}]"]),
            (16, [f"v_mfma_f32_32x32x16_bf16 v[{OA}:{OA+15}], v[{vc+4}:{vc+7}], v[{PA+4}:{PA+7}], v[{OA}:{OA+15}]"]),
            (22, ["s_waitcnt lgkmcnt(0)"]),
        ]
        k("\n".join(interleave(e, items)))
    if Kern.STAMPS:
        for r in range(3):
            l = k.label("rs")
            k(f"s_cmp_eq_u32 s32, {r}\ns_cbranch_scc0 {l}")
            k.stamp(3 + r)
            k(f"{l}:")
    k(f"""
s_add_u32 s32, s32, 1
v_mov_b32 v{AC}, v{AC+3}
v_mov_b32 v{AC+1}, v{AC+4}
v_mov_b32 v{AC+2}, v{AC+5}
s_mov_b32 s33, {SLOT}
s_cmp_eq_u32 s32, 2
s_cselect_b32 s33, {-2*SLOT & 0xffffffff}, s33
v_add_u32 v{AC+3}, s33, v{AC+3}
v_add_u32 v{AC+4}, s33, v{AC+4}
v_add_u32 v{AC+5}, s33, v{AC+5}
s_cmp_lt_u32 s32, 4
s_cbranch_scc1 L_attn_round
""")
    k.stamp(6)
    vl = VF + 8
    k(f"""
v_mfma_f32_32x32x16_bf16 v[{OB}:{OB+15}], v[{vl}:{vl+3}], v[{PB}:{PB+3}], v[{OB}:{OB+15}]
v_mfma_f32_32x32x16_bf16 v[{OB}:{OB+15}], v[{vl+4}:{vl+7}], v[{PB+4}:{PB+7}], v[{OB}:{OB+15}]
s_lshl_b32 s34, s20, 1
s_add_u32 s34, s34, s21           ; qg*2 + c
s_mul_i32 s35, s34, 3072
s_xor_b32 s36, s34, 1
s_mul_i32 s36, s36, 3072
v_add_u32 v6, s35, v3
v_add_u32 v6, {SLOT}, v6
v_add_u32 v7, s36, v3
v_add_u32 v7, {SLOT}, v7
s_cmp_eq_u32 s21, 0
s_cbranch_scc0 L_attn_c1
s_nop 7
s_nop 3
""")
    for j in range(3):
        k(f"ds_write_b128 v6, v[{OB+4*j}:{OB+4*j+3}] offset:{j*1024}")
    k("s_branch L_attn_m\nL_attn_c1:")
    for j in range(3):
        k(f"ds_write_b128 v6, v[{OA+4*j}:{OA+4*j+3}] offset:{j*1024}")
    k("s_nop 7")
    for j in range(12):
        k(f"v_mov_b32 v{OA+j}, v{OB+j}")
    for j in range(4):
        k(f"v_mov_b32 v{Q1+j}, v{Q1+4+j}")
    k(f"v_mov_b32 v{Q2}, v{Q2+2}\nv_mov_b32 v{Q2+1}, v{Q2+3}")
    k(f"""L_attn_m:
s_waitcnt lgkmcnt(0)
s_barrier
""")
    for j in range(3):
        k(f"ds_read_b128 v[{SA+4*j}:{SA+4*j+3}], v7 offset:{j*1024}")
    k("s_mov_b32 s39, 0\ns_waitcnt lgkmcnt(0)")
    for j in range(12):
        k(f"v_add_f32 v{OA+j}, v{OA+j}, v{SA+j}")
    k(f"""
L_attn_norm:
v_mov_b32 v{T}, v{OA+8}
v_mov_b32 v{T+1}, v{OA+8}
s_nop 1
v_permlane32_swap_b32 v{T}, v{T+1}
s_mov_b32 s40, 0x5f800000                 ; 2^64
s_nop 0
v_cmp_lt_f32 vcc, v{T+1}, s40
s_nop 4
s_cmp_eq_u64 vcc, exec
s_cbranch_scc1 L_attn_ok
s_cmp_eq_u32 s39, 0
s_cbranch_scc1 L_attn_fb
L_attn_ok:
v_rcp_f32 v{T}, v{T+1}
s_nop 0
""")
    for j in range(12):
        k(f"v_mul_f32 v{OA+j}, v{OA+j}, v{T}")
    for j in range(6):
        k(f"v_cvt_pk_bf16_f32 v{SB+j}, v{OA+2*j}, v{OA+2*j+1}")
    k(f"""
s_lshl_b32 s34, s19, 8
s_lshl_b32 s35, s20, 6
s_add_u32 s34, s34, s35
s_lshl_b32 s35, s21, 5
s_add_u32 s34, s34, s35           ; q base
v_and_b32 v4, 31, v2
v_add_u32 v4, s34, v4             ; q
v_lshrrev_b32 v5, 4, v4           ; rowblk
v_mul_u32_u24 v5, {20*1024}, v5
v_and_b32 v4, 15, v4
v_lshl_add_u32 v5, v4, 4, v5      ; rowblk*20480 + (q&15)*16
v_lshrrev_b32 v6, 5, v2           ; hh
s_mov_b32 s38, {WS['OF']}
s_mul_i32 s35, s18, 5
v_add_u32 v6, s35, v6             ; k4 for i=0
""")
    for i in range(3):
        k(f"""
v_add_u32 v7, {2*i}, v6           ; k4
v_lshrrev_b32 v8, 3, v7
v_lshlrev_b32 v8, 10, v8
v_and_b32 v9, 3, v7
v_lshl_add_u32 v8, v9, 8, v8
v_bfe_u32 v9, v7, 2, 1
v_lshl_add_u32 v8, v9, 3, v8
v_add_u32 v8, v8, v5
""")
        if i == 2:
            k("s_mov_b32 exec_lo, -1\ns_mov_b32 exec_hi, 0")
        k(f"buffer_store_dwordx2 v[{SB+2*i}:{SB+2*i+1}], v8, s[12:15], s38 offen")
    k.stamp_end(12, WS['STAMP'], 3, 2)
    k("s_endpgm")
    k(f"""L_attn_fb:
s_mov_b32 s39, 1
v_cndmask_b32 v{Q2}, v{Q2}, 0, s[30:31]
v_mov_b32 v{T}, 0xff800000                ; -inf
v_lshlrev_b32 v4, 3, v2
s_mov_b32 s40, s22
s_mov_b32 s41, 0
L_attn_fb1:
buffer_load_dwordx4 v[{KF}:{KF+3}], v3, s[12:15], s40 offen
buffer_load_dwordx2 v[{KF+4}:{KF+5}], v4, s[12:15], s40 offen offset:1024
s_waitcnt vmcnt(0)
v_mfma_f32_32x32x16_bf16 v[{SA}:{SA+15}], v[{KF}:{KF+3}], v[{Q1}:{Q1+3}], 0
v_mfma_f32_32x32x8_bf16 v[{SA}:{SA+15}], v[{KF+4}:{KF+5}], v[{Q2}:{Q2+1}], v[{SA}:{SA+15}]
s_nop 7
s_nop 7
""")
    k("\n".join(maxtree(T, SA, False)))
    k(f"""s_add_u32 s40, s40, {KVT}
s_add_u32 s41, s41, 1
s_cmp_lt_u32 s41, 64
s_cbranch_scc1 L_attn_fb1
""")
    k(xhalf_max(T, T + 2))
    k(setm(T, Q2, T + 3))
    for j in range(16):
        k(f"v_mov_b32 v{OA+j}, 0")
    k(f"""s_mov_b32 s40, s22
s_mov_b32 s41, 0
L_attn_fb2:
buffer_load_dwordx4 v[{KF}:{KF+3}], v3, s[12:15], s40 offen
buffer_load_dwordx2 v[{KF+4}:{KF+5}], v4, s[12:15], s40 offen offset:1024
buffer_load_dwordx4 v[{VF}:{VF+3}], v5, s[12:15], s40 offen offset:1536
buffer_load_dwordx4 v[{VF+4}:{VF+7}], v5, s[12:15], s40 offen offset:2208
s_waitcnt vmcnt(0)
v_mfma_f32_32x32x16_bf16 v[{SA}:{SA+15}], v[{KF}:{KF+3}], v[{Q1}:{Q1+3}], 0
v_mfma_f32_32x32x8_bf16 v[{SA}:{SA+15}], v[{KF+4}:{KF+5}], v[{Q2}:{Q2+1}], v[{SA}:{SA+15}]
s_nop 7
s_nop 7
""")
    k("\n".join(exps(SA, PA)))
    k(f"""s_nop 1
v_mfma_f32_32x32x16_bf16 v[{OA}:{OA+15}], v[{VF}:{VF+3}], v[{PA}:{PA+3}], v[{OA}:{OA+15}]
v_mfma_f32_32x32x16_bf16 v[{OA}:{OA+15}], v[{VF+4}:{VF+7}], v[{PA+4}:{PA+7}], v[{OA}:{OA+15}]
s_add_u32 s40, s40, {KVT}
s_add_u32 s41, s41, 1
s_cmp_lt_u32 s41, 64
s_cbranch_scc1 L_attn_fb2
s_nop 7
s_nop 7
s_branch L_attn_norm
""")
    k(f"""L_attn_prep:
s_load_dwordx2 s[44:45], s[0:1], {ARG['wo']}
s_load_dwordx4 s[48:51], s[0:1], {ARG['wg']}
s_load_dwordx2 s[46:47], s[0:1], {ARG['wd']}
s_mov_b32 s14, {WS_TOTAL}
s_mov_b32 s15, 0x00020000
s_sub_u32 s20, s3, 8
s_lshl_b32 s42, s2, 3
s_lshl_b32 s21, s20, 2
s_add_u32 s42, s42, s21           ; first job
s_mul_i32 s43, s20, 5120
s_add_u32 s43, s43, {PSCR}
s_mov_b32 s41, 0
s_waitcnt lgkmcnt(0)
s_and_b32 s13, s13, 0xffff
L_attn_ploop:
""")
    prep_job_part1(k, 42, 43, "ap")
    k("s_barrier")
    prep_job_part2(k, 43, "ap", 0)
    k(f"""s_add_u32 s42, s42, 1
s_add_u32 s41, s41, 1
s_cmp_lt_u32 s41, 4
s_cbranch_scc1 L_attn_ploop
L_attn_end:
s_endpgm""")
    return k, 256, 640, LDS


def rowgemm_epilogue(k, name, final, T, ACC, R):
    A = ACC
    for cb in range(5):
        for j in range(2):
            a0, a1 = T + cb * 4 + 2 * j, T + cb * 4 + 2 * j + 1
            rr = R + 2 * cb + j
            k(f"""v_cvt_pk_bf16_f32 v{A}, v{a0}, v{a1}
v_lshlrev_b32 v{A+1}, 16, v{rr}
v_and_b32 v{A+2}, 0xffff0000, v{rr}
v_lshlrev_b32 v{a0}, 16, v{A}
v_and_b32 v{a1}, 0xffff0000, v{A}
v_add_f32 v{a0}, v{a0}, v{A+1}
v_add_f32 v{a1}, v{a1}, v{A+2}
v_cvt_pk_bf16_f32 v{rr}, v{a0}, v{a1}""")
        if final:
            k(f"buffer_store_dwordx2 v[{R+2*cb}:{R+2*cb+1}], v{T+20}, s[4:7], 0 offen offset:{cb*32}")
        else:
            k(f"buffer_store_dwordx2 v[{R+2*cb}:{R+2*cb+1}], v3, s[12:15], s{40+cb} offen")
    if not final:
        k(f"v_mov_b32 v{A}, 0\nv_mov_b32 v{A+1}, 0\nv_mov_b32 v{A+2}, {ONES_BF16}")
        for i in range(10):
            k(f"v_dot2c_f32_bf16 v{A}, v{R+i}, v{A+2}\nv_dot2c_f32_bf16 v{A+1}, v{R+i}, v{R+i}")
        k(f"""
s_nop 2
ds_swizzle_b32 v{A+3}, v{A} offset:0x401F
ds_swizzle_b32 v{A+4}, v{A+1} offset:0x401F
s_waitcnt lgkmcnt(0)
v_add_f32 v{A}, v{A}, v{A+3}
v_add_f32 v{A+1}, v{A+1}, v{A+4}
v_mov_b32 v{A+3}, v{A}
v_mov_b32 v{A+4}, v{A+1}
s_nop 1
v_permlane32_swap_b32 v{A+3}, v{A}
v_permlane32_swap_b32 v{A+4}, v{A+1}
s_nop 1
v_add_f32 v{A}, v{A}, v{A+3}
v_add_f32 v{A+1}, v{A+1}, v{A+4}
v_lshlrev_b32 v4, 6, v7           ; row*64
s_lshl_b32 s34, s18, 3
s_add_u32 s34, s34, {WS['STATS']}
v_cmp_gt_u32 vcc, 16, v2
s_and_saveexec_b64 s[36:37], vcc
buffer_store_dwordx2 v[{A}:{A+1}], v4, s[12:15], s34 offen
""")


def gen_rowgemm(name, KS, srcA, srcB, final):
    k = Kern(name, 168)
    NS = KS // 2
    RING = 12
    SLOT = 10 * 1024
    LDS = RING * SLOT
    PD = 8 if KS == 54 else 5
    ACC = 8
    T = 16
    R = 40
    C2 = 52
    FS = 92
    AS = 132
    AS = FS + 40
    k.nvgpr = AS + PD * 8
    k(f"""
s_cmp_ge_u32 s2, 256
s_cbranch_scc1 L_{name}_end
s_load_dwordx2 s[12:13], s[0:1], {ARG['ws']}
s_load_dwordx2 s[4:5], s[0:1], {ARG['out'] if final else ARG['x']}
v_lshrrev_b32 v1, 6, v0
v_and_b32 v2, 63, v0
s_and_b32 s16, s2, 7              ; xcd
v_readfirstlane_b32 s3, v1        ; wave
s_lshr_b32 s17, s2, 3             ; 0..31
s_and_b32 s18, s16, 1
s_lshl_b32 s18, s18, 2
s_and_b32 s19, s17, 3
s_add_u32 s18, s18, s19
s_lshr_b32 s19, s16, 1
s_lshl_b32 s19, s19, 3
s_lshr_b32 s20, s17, 2
s_add_u32 s19, s19, s20
v_lshlrev_b32 v3, 4, v2
s_waitcnt lgkmcnt(0)
s_and_b32 s13, s13, 0xffff
s_mov_b32 s14, {WS_TOTAL}
s_mov_b32 s15, 0x00020000
s_and_b32 s5, s5, 0xffff
s_mov_b32 s6, {S*D*2}
s_mov_b32 s7, 0x00020000
s_cmp_ge_u32 s3, 6
s_cbranch_scc1 L_{name}_pf
s_cmp_ge_u32 s3, 4
s_cbranch_scc1 L_{name}_loader
""")
    k.stamp(0)
    k(f"""
s_and_b32 s20, s3, 1              ; r
s_lshr_b32 s21, s3, 1             ; kk
s_lshl_b32 s22, s19, 2
s_lshl_b32 s23, s20, 1
s_add_u32 s22, s22, s23           ; first rb
s_mul_i32 s22, s22, {KS}
s_add_u32 s22, s22, s21
s_lshl_b32 s22, s22, 10
s_add_u32 s22, s22, {WS[srcA]}
v_add_u32 v4, {KS*1024}, v3       ; j=1 voffset
""")

    def aload(st):
        a = AS + (st % PD) * 8
        if os.environ.get("NOA"):
            return
        k(f"buffer_load_dwordx4 v[{a}:{a+3}], v3, s[12:15], s22 offen")
        k(f"buffer_load_dwordx4 v[{a+4}:{a+7}], v4, s[12:15], s22 offen")
        k("s_add_u32 s22, s22, 2048")
    for st in range(min(PD, NS)):
        aload(st)
    k(f"""
v_and_b32 v5, 15, v2
v_lshrrev_b32 v6, 4, v2
s_lshl_b32 s24, s20, 1
s_add_u32 s24, s24, s21
s_lshl_b32 s30, s19, 6
s_lshl_b32 s31, s24, 4
s_add_u32 s30, s30, s31
v_add_u32 v7, s30, v5             ; row
v_mul_u32_u24 v{T+20}, 1280, v7
s_mul_i32 s31, s18, 160
v_lshl_add_u32 v{T+20}, v6, 3, v{T+20}
v_add_u32 v{T+20}, s31, v{T+20}
s_lshl_b32 s32, s19, 2
s_add_u32 s32, s32, s24
s_mul_i32 s32, s32, {20*1024}
s_add_u32 s32, s32, {WS['HF']}
s_mul_i32 s33, s18, 5             ; first cbg
""")
    for cb in range(5):
        k(f"""s_add_u32 s34, s33, {cb}
s_lshr_b32 s35, s34, 1
s_lshl_b32 s35, s35, 10
s_and_b32 s34, s34, 1
s_lshl_b32 s34, s34, 3
s_add_u32 s35, s35, s34
s_add_u32 s{40+cb}, s35, s32""")
        if final:
            k(f"buffer_load_dwordx2 v[{R+2*cb}:{R+2*cb+1}], v3, s[12:15], s{40+cb} offen")
        else:
            k(f"buffer_load_dwordx2 v[{R+2*cb}:{R+2*cb+1}], v{T+20}, s[4:7], 0 offen offset:{cb*32}")
    for i in range(40):
        k(f"v_mov_b32 v{C2+i}, 0")
    k(f"""
s_mul_i32 s25, s21, 5120
v_add_u32 v8, s25, v3
v_add_u32 v9, {6*SLOT}, v8
""")
    nA_issued = min(PD, NS)

    def mf(st):
        b = FS + (st % 2) * 20
        a = AS + (st % PD) * 8
        if os.environ.get("NOMF"):
            return
        for j in range(2):
            for cb in range(5):
                c = C2 + (j * 5 + cb) * 4
                k(f"v_mfma_f32_16x16x32_bf16 v[{c}:{c+3}], v[{b+4*cb}:{b+4*cb+3}], v[{a+4*j}:{a+4*j+3}], v[{c}:{c+3}]")
    for st in range(NS + 1):
        if st < NS:
            k("s_barrier")
            sl = st % RING
            areg = 8 if sl < 6 else 9
            b = FS + (st % 2) * 20
            for cb in range(5):
                if os.environ.get("NODS"):
                    continue
                k(f"ds_read_b128 v[{b+4*cb}:{b+4*cb+3}], v{areg} offset:{(sl % 6)*SLOT + cb*1024}")
        if st >= 1:
            p = st - 1
            younger = 2 * (nA_issued - 1 - p)
            if p < min(PD, NS):
                younger += 5
            k(f"s_waitcnt vmcnt({min(younger, 63)})")
            mf(p)
            if p + PD < NS:
                aload(p + PD)
                nA_issued += 1
        if st < NS:
            k("s_waitcnt lgkmcnt(0)")
        if st == 1:
            k.stamp(1)
    k.stamp(2)
    k(f"""
s_barrier
s_mul_i32 s26, s3, 5120
s_xor_b32 s27, s3, 2
s_mul_i32 s27, s27, 5120
v_add_u32 v10, s26, v3
v_add_u32 v11, s27, v3
s_cmp_eq_u32 s21, 0
s_cbranch_scc0 L_{name}_k1
s_nop 4
""")
    for cb in range(5):
        c = C2 + (5 + cb) * 4
        k(f"ds_write_b128 v10, v[{c}:{c+3}] offset:{cb*1024}")
    for i in range(20):
        k(f"v_mov_b32 v{T+i}, v{C2+i}")
    k(f"s_branch L_{name}_k2\nL_{name}_k1:\ns_nop 4")
    for cb in range(5):
        c = C2 + cb * 4
        k(f"ds_write_b128 v10, v[{c}:{c+3}] offset:{cb*1024}")
    for i in range(20):
        k(f"v_mov_b32 v{T+i}, v{C2+20+i}")
    k(f"L_{name}_k2:\ns_waitcnt lgkmcnt(0)\ns_barrier")
    for cb in range(5):
        k(f"ds_read_b128 v[{C2+4*cb}:{C2+4*cb+3}], v11 offset:{cb*1024}")
    k("s_waitcnt lgkmcnt(0) vmcnt(0)")
    for i in range(20):
        k(f"v_add_f32 v{T+i}, v{T+i}, v{C2+i}")
    rowgemm_epilogue(k, name, final, T, ACC, R)
    k.stamp_end(12, WS['STAMP'], 3, 5 if final else 3)
    k("s_endpgm")
    k(f"""L_{name}_loader:
s_sub_u32 s20, s3, 4              ; L
s_mul_i32 s24, s18, {5*KS}
s_lshl_b32 s24, s24, 10
s_add_u32 s24, s24, {WS[srcB]}
""")
    for i in range(5):
        k(f"s_add_u32 s25, s24, {i*KS*1024}\nv_add_u32 v{8+i}, s25, v3")
    k(f"""
s_lshl_b32 s26, s20, 10           ; soffset = (2s+L)*1024
s_mul_i32 s27, s20, 5120
""")

    def issue(st):
        for i in range(5):
            if os.environ.get("NOB"):
                continue
            k(f"s_add_u32 m0, s27, {(st % RING)*SLOT + i*1024}\ns_add_u32 s28, s26, {st*2048}\nbuffer_load_dwordx4 v{8+i}, s[12:15], s28 offen lds")
    loader_schedule(k, name, NS, RING, 5, issue, first=3, ramp=3)
    k("s_endpgm")
    k(f"""L_{name}_pf:
s_lshr_b32 s20, s16, 1
s_lshl_b32 s20, s20, 5
s_add_u32 s20, s20, s17
s_mul_i32 s20, s20, {KS*1024}
s_add_u32 s20, s20, {WS[srcA]}
s_and_b32 s21, s16, 1
s_mul_i32 s21, s21, 20
s_add_u32 s21, s21, s17
s_mul_i32 s21, s21, {KS*1024}
s_add_u32 s21, s21, {WS[srcB]}
s_cmp_lt_u32 s17, 20
s_cselect_b32 s21, s21, s20
v_lshrrev_b32 v4, 4, v2
v_lshlrev_b32 v4, 10, v4
v_and_b32 v5, 7, v2
v_lshl_add_u32 v4, v5, 7, v4
v_mov_b32 v5, s20
v_mov_b32 v6, s21
v_and_b32 v7, 8, v2
v_cmp_eq_u32 vcc, 0, v7
v_cndmask_b32 v5, v6, v5, vcc
v_add_u32 v4, v4, v5
""")
    if int(os.environ.get("PF_ROW", "0")):
        for n in range((KS + 3) // 4):
            if 4 * n + 4 > KS:
                k(f"v_cmp_gt_u32 vcc, {(KS - 4*n)*16}, v2\ns_and_b64 exec, exec, vcc")
            k(f"buffer_load_dword v{8+n}, v4, s[12:15], 0 offen\nv_add_u32 v4, 4096, v4")
    k(f"L_{name}_end:\ns_endpgm")
    return k, 256, 448, LDS


def gen_gateup():
    k = Kern("gateup_kernel", 96, nagpr=160)
    SLOT = 20480
    RING = 7
    NS = 14
    CS = RING * SLOT
    LDS = CS + 1024
    ACC = 8
    BF = 40
    MR = 72
    CSR = 76
    T = 84
    k(f"""
s_cmp_ge_u32 s2, 256
s_cbranch_scc1 L_gu_end
s_load_dwordx2 s[12:13], s[0:1], {ARG['ws']}
v_lshrrev_b32 v1, 6, v0
v_and_b32 v2, 63, v0
s_and_b32 s16, s2, 7              ; xcd
v_readfirstlane_b32 s3, v1        ; wave
s_lshr_b32 s17, s2, 3             ; 0..31
s_and_b32 s18, s16, 3
s_lshl_b32 s18, s18, 2
s_and_b32 s19, s17, 3
s_add_u32 s18, s18, s19           ; slice 0..15
s_lshr_b32 s19, s16, 2
s_lshl_b32 s19, s19, 3
s_lshr_b32 s20, s17, 2
s_add_u32 s19, s19, s20
v_lshlrev_b32 v3, 4, v2
s_mul_i32 s21, s18, 7
s_sub_u32 s22, s18, 12
s_max_i32 s22, s22, 0
s_sub_u32 s21, s21, s22           ; fb0
s_cmp_ge_u32 s18, 12
s_cselect_b32 s22, 6, 7
s_waitcnt lgkmcnt(0)
s_and_b32 s13, s13, 0xffff
s_mov_b32 s14, {WS_TOTAL}
s_mov_b32 s15, 0x00020000
s_cmp_ge_u32 s3, 4
s_cbranch_scc1 L_gu_loader
""")
    k.stamp(0)
    ST = ACC + 16
    cpr = [ST + 8 + i for i in range(8)] + [T + i for i in range(12)]
    k(f"""
s_lshl_b32 s29, s19, 3
s_lshl_b32 s30, s3, 1
s_add_u32 s29, s29, s30           ; rb0
s_mul_i32 s30, s29, {20*1024}
s_add_u32 s30, s30, {WS['HF']}
v_add_u32 v4, {20*1024}, v3
""")
    vm = []

    def aload(ks):
        off = (ks % 4) * 1024
        o = f" offset:{off}" if off else ""
        so = 41 + ks // 4
        return [f"buffer_load_dwordx4 a[{8*ks}:{8*ks+3}], v3, s[12:15], s{so} offen{o}",
                f"buffer_load_dwordx4 a[{8*ks+4}:{8*ks+7}], v4, s[12:15], s{so} offen{o}"]
    for i in range(5):
        k(f"s_add_u32 s{41+i}, s30, {i*4096}")
    NPRE = 3
    for ks in range(NPRE):
        k("\n".join(aload(ks)))
        vm += [("A", ks)] * 2
    k(f"""
v_and_b32 v5, 15, v2
v_lshrrev_b32 v6, 4, v2
s_lshl_b32 s31, s29, 4
v_add_u32 v7, s31, v5
v_lshlrev_b32 v7, 6, v7
v_lshl_add_u32 v{MR}, v6, 4, v7
v_cmp_le_u32 vcc, 112, v0
v_subrev_u32 v7, 112, v0
v_cndmask_b32 v7, v0, v7, vcc
v_mov_b32 v{MR+2}, 0
v_mov_b32 v{MR+3}, 1728
v_cndmask_b32 v{MR+2}, v{MR+2}, v{MR+3}, vcc
v_add_u32 v7, v7, v{MR+2}
s_lshl_b32 s31, s21, 4
v_add_u32 v7, s31, v7
v_lshlrev_b32 v{MR+1}, 2, v7
s_mov_b32 s31, {WS['STATS']}
s_mov_b32 s32, {WS['CSP']}
v_lshlrev_b32 v6, 4, v6
v_add_u32 v6, {CS}, v6
s_mul_i32 s33, s29, {54*1024}
s_add_u32 s33, s33, {WS['ACT']}
s_mov_b32 s34, 0
s_mov_b32 s35, 0
""")
    side_loads = [f"buffer_load_dwordx4 v[{ST}:{ST+3}], v{MR}, s[12:15], s31 offen",
                  f"buffer_load_dwordx4 v[{ST+4}:{ST+7}], v{MR}, s[12:15], s31 offen offset:1024"]
    for i in range(20):
        side_loads.append(f"buffer_load_dword v{cpr[i]}, v{MR+1}, s[12:15], s32 offen\ns_add_u32 s32, s32, {2*1728*4}")

    def setup_stats():
        r = []
        for rb in range(2):
            a = ST + 4 * rb
            r += f"""v_add_f32 v{a}, v{a}, v{a+2}
v_add_f32 v{a+1}, v{a+1}, v{a+3}
ds_swizzle_b32 v{a+2}, v{a} offset:0x401F
ds_swizzle_b32 v{a+3}, v{a+1} offset:0x401F
s_waitcnt lgkmcnt(0)
v_add_f32 v{a}, v{a}, v{a+2}
v_add_f32 v{a+1}, v{a+1}, v{a+3}
v_mov_b32 v{a+2}, v{a}
v_mov_b32 v{a+3}, v{a+1}
s_nop 1
v_permlane32_swap_b32 v{a+2}, v{a}
v_permlane32_swap_b32 v{a+3}, v{a+1}
s_nop 1
v_add_f32 v{a}, v{a}, v{a+2}
v_add_f32 v{a+1}, v{a+1}, v{a+3}
v_mul_f32 v{a}, {f32bits(1.0/640)}, v{a}
v_mul_f32 v{a+1}, {f32bits(1.0/640)}, v{a+1}
v_fma_f32 v{a+1}, -v{a}, v{a}, v{a+1}
v_max_f32 v{a+1}, 0, v{a+1}
v_add_f32 v{a+1}, {f32bits(1e-5)}, v{a+1}
v_rsq_f32 v{MR+rb}, v{a+1}
s_nop 0
v_mul_f32 v{MR+2+rb}, v{a}, v{MR+rb}""".split("\n")
        for i in range(1, 20):
            r.append(f"v_add_f32 v{cpr[0]}, v{cpr[0]}, v{cpr[i]}")
        r += f"""v_lshlrev_b32 v7, 2, v0
v_add_u32 v7, {CS}, v7
v_cmp_gt_u32 vcc, 224, v0
s_nop 3
s_and_saveexec_b64 s[36:37], vcc
ds_write_b32 v7, v{cpr[0]}
s_mov_b64 exec, s[36:37]
s_waitcnt lgkmcnt(0)""".split("\n")
        return r

    def epi(accset):
        r = []
        for rb in range(2):
            g = ACC + accset * 16 + rb * 4
            u = ACC + accset * 16 + (2 + rb) * 4
            for j in range(4):
                t = T + rb * 6 + (j & 1) * 3
                r += [f"v_mul_f32 v{t}, v{MR+2+rb}, v{CSR+j}",
                      f"v_mul_f32 v{t+1}, v{MR+2+rb}, v{CSR+4+j}",
                      f"v_fma_f32 v{g+j}, v{g+j}, v{MR+rb}, -v{t}",
                      f"v_fma_f32 v{u+j}, v{u+j}, v{MR+rb}, -v{t+1}",
                      f"v_mul_f32 v{t+2}, {f32bits(-math.log2(math.e))}, v{g+j}",
                      f"v_mul_f32 v{u+j}, v{u+j}, v{g+j}",
                      f"v_exp_f32 v{t+2}, v{t+2}",
                      f"NOP1",
                      f"v_add_f32 v{t+2}, 1.0, v{t+2}",
                      f"v_rcp_f32 v{t+2}, v{t+2}",
                      f"NOP1",
                      f"v_mul_f32 v{u+j}, v{u+j}, v{t+2}"]
            t = T + rb * 6
            r += [f"v_cvt_pk_bf16_f32 v{g}, v{u}, v{u+1}",
                  f"v_cvt_pk_bf16_f32 v{g+1}, v{u+2}, v{u+3}",
                  f"buffer_store_dwordx2 v[{g}:{g+1}], v3, s[12:15], s{38+rb} offen"]
        return [x for x in r if x != "NOP1"]

    def units(ins):
        return 2 if ins.startswith(("v_exp", "v_rcp", "v_rsq")) else 1

    def epi_setup():
        return f"""s_add_u32 s37, s21, s36
s_lshr_b32 s38, s37, 1
s_lshl_b32 s38, s38, 10
s_and_b32 s37, s37, 1
s_lshl_b32 s37, s37, 3
s_add_u32 s38, s38, s37
s_add_u32 s38, s38, s33
s_cmp_lt_u32 s36, s22
s_cselect_b32 s38, s38, 0x7ff00000
s_add_u32 s39, s38, {54*1024}
s_lshl_b32 s37, s36, 6
v_add_u32 v7, s37, v6
ds_read_b128 v[{CSR}:{CSR+3}], v7
ds_read_b128 v[{CSR+4}:{CSR+7}], v7 offset:448"""

    def next_stage():
        return f"""s_barrier
v_add_u32 v5, s35, v3
s_add_u32 s35, s35, {SLOT}
s_cmp_eq_u32 s35, {RING*SLOT}
s_cselect_b32 s35, 0, s35""".split("\n")

    def rd(ksr):
        b = BF + (ksr % 4) * 8
        kl = ksr % 10
        return [f"ds_read_b128 v[{b}:{b+3}], v5 offset:{kl*1024}",
                f"ds_read_b128 v[{b+4}:{b+7}], v5 offset:{10240 + kl*1024}"]

    def block(accset, mode, last=False):
        nonlocal_side = side_loads if mode == "first" else []
        if mode == "first":
            e = []
            stats_at = 13
        else:
            e = epi(accset ^ 1)
            k("s_sub_u32 s36, s34, 1")
            k(epi_setup())
        for ks in range(20):
            ksr = ks + 3
            gaps = [[], [], [], []]
            issue_next = not (ksr >= 20 and last)
            if issue_next:
                r2 = rd(ksr)
                if ksr % 10 == 0:
                    k("\n".join(next_stage()))
                gaps[0].append(r2[0])
                gaps[2].append(r2[1])
            if mode == "first":
                idx = max(i for i, t in enumerate(vm) if t == ("A", ks))
                k(f"s_waitcnt vmcnt({min(63, len(vm) - 1 - idx)})")
                al = aload(ks + NPRE) if ks + NPRE < 20 else None
                for gi in range(4):
                    if gi in (1, 3) and al:
                        gaps[gi].append(al[gi // 2])
                        vm.append(("A", ks + NPRE))
                    if gi in (0, 2) and nonlocal_side and ks < 12:
                        gaps[gi].append(nonlocal_side.pop(0))
                        vm.append(("S", 0))
                if ks == stats_at:
                    assert not nonlocal_side
                    k("s_waitcnt vmcnt(0)")
                    k("\n".join(setup_stats()))
            if mode == "first" and ks == stats_at:
                pass
            else:
                if last:
                    outstanding = min(19 - ks, 2) * 2
                else:
                    outstanding = 4
                if mode == "epi" and ks == 0:
                    outstanding += 2
                k(f"s_waitcnt lgkmcnt({outstanding})")
            b = BF + (ks % 4) * 8
            gi = 0
            for mat in range(2):
                for rb in range(2):
                    c = ACC + accset * 16 + (mat * 2 + rb) * 4
                    a = (ks * 2 + rb) * 4
                    src_c = "0" if ks == 0 else f"v[{c}:{c+3}]"
                    k(f"v_mfma_f32_16x16x32_bf16 v[{c}:{c+3}], v[{b+4*mat}:{b+4*mat+3}], a[{a}:{a+3}], {src_c}")
                    cap = 2 - len(gaps[gi])
                    if gaps[gi]:
                        k("\n".join(gaps[gi]))
                    if mode == "epi" and ks >= 2:
                        while e and cap >= units(e[0]):
                            cap -= units(e[0])
                            k(e.pop(0))
                        if e and cap > 0 and len(gaps[gi]) == 0 and units(e[0]) == 2 and cap == 2:
                            k(e.pop(0))
                    gi += 1
        if e:
            k("\n".join(e))
        k("s_add_u32 s34, s34, 1")
    k("\n".join(next_stage()))
    k.stamp(1)
    for ksr in range(3):
        k("\n".join(rd(ksr)))
    block(0, "first")
    k.stamp(2)
    k("s_mov_b32 s40, 0\nL_gu_loop:")
    block(1, "epi")
    block(0, "epi")
    k("s_add_u32 s40, s40, 1\ns_cmp_lt_u32 s40, 2\ns_cbranch_scc1 L_gu_loop")
    k.stamp(3)
    block(1, "epi")
    block(0, "epi", last=True)
    k.stamp(4)
    k("s_sub_u32 s36, s34, 1")
    k(epi_setup())
    k("s_waitcnt lgkmcnt(0)\ns_nop 7")
    k("\n".join(epi(0)))
    k.stamp_end(12, WS['STAMP'], 3, 4)
    k("s_endpgm")
    k(f"""L_gu_loader:
s_mul_i32 s23, s21, {20*1024}
s_mov_b32 s24, {WS['WGF']}
s_cmp_eq_u32 s3, 5
s_cselect_b32 s24, {WS['WUF']}, s24
s_add_u32 s23, s23, s24
s_sub_u32 s25, s3, 4
s_mul_i32 s25, s25, 10240
""")

    def issue(st):
        for g0 in range(0, 10, 4):
            k(f"s_add_u32 m0, s25, {(st % RING)*SLOT + g0*1024}\ns_add_u32 s28, s23, {st*10240 + g0*1024}")
            for i in range(g0, min(g0 + 4, 10)):
                o = f" offset:{(i-g0)*1024}" if i > g0 else ""
                k(f"buffer_load_dwordx4 v3, s[12:15], s28 offen{o} lds")
    loader_schedule(k, "gu", NS, RING, 10, issue, first=2, ramp=2, early=1)
    k("L_gu_end:\ns_endpgm")
    return k, 256, 384, LDS


HEADER = open("sequential_preLN__mha_block__swiglu_ffn__prompt.s.ref").read().split("; Override")[0].rstrip("\n").split("\n")


def build(verbose=False):
    ks = [gen_qkv(), gen_attn(), gen_rowgemm("oproj_kernel", 20, "OF", "WOF", False), gen_gateup(),
          gen_rowgemm("down_kernel", 54, "ACT", "WDF", True)]
    kernels = [x[0] for x in ks]
    launches = [(x[0].name, x[1], x[2], x[3]) for x in ks]
    fl = os.environ.get("STOREFLAGS", "")
    if fl:
        for kk in kernels:
            kk.lines = [(l + " " + fl) if ("buffer_store" in l and ";" not in l) else l for l in kk.lines]
    return build_file(HEADER, kernels, launches, verbose)


if __name__ == "__main__":
    out = "sequential_preLN__mha_block__swiglu_ffn__prompt.s"
    if "-stamp" in sys.argv:
        Kern.STAMPS = True
        out = os.environ.get("STAMP_OUT", "stamp.s")
    txt = build(verbose="-v" in sys.argv)
    open(out, "w").write(txt)
    print("wrote", out, len(txt), "bytes; WS_TOTAL", WS_TOTAL)
```
